```python
import torch

def _softmax(x, axis=-1):
    return torch.softmax(x, dim=axis)
def _gelu(x):
    return torch.nn.functional.gelu(x, approximate="tanh")
def _silu(x):
    return torch.nn.functional.silu(x)
def _sigmoid(x):
    return torch.sigmoid(x)
def _layernorm(x, axis=-1, eps=1e-5):
    m = x.mean(dim=axis, keepdim=True)
    v = x.var(dim=axis, keepdim=True, unbiased=False)
    return (x - m) / torch.sqrt(v + eps)
def _scatter_add(tgt, idx, src, axis=0):
    return tgt.clone().index_add_(axis, idx, src)
def _segment_sum(src, seg, n):
    out = torch.zeros((n,) + src.shape[1:], dtype=src.dtype)
    return out.index_add_(0, seg, src)
def _pad(x, pw):
    flat = tuple(v for pair in reversed(pw) for v in pair)
    return torch.nn.functional.pad(x, flat)

kernel_name = 'gated_mix__sliding_block_cached__glu_gated_geglu__decode'

def setup_inputs():

    _w = (lambda a: (lambda t: t.to(torch.bfloat16) if t.is_floating_point() else t)(torch.as_tensor(a)))
    def _A_setup():
        B, Sq, D = 4, 1, 640
        Hq, Hkv, Sk, Dh = 32, 32, 4096, 128
        assert Hq % Hkv == 0, (Hq, Hkv)
        return {
            "x": _w((lambda *s: torch.randn(*s, dtype=torch.bfloat16) * 0.05)(B, Sq, D)),
            "k_cache": _w((lambda *s: torch.randn(*s, dtype=torch.bfloat16) * 6.4)(B, Hkv, Sk, Dh)),
            "v_cache": _w((lambda *s: torch.randn(*s, dtype=torch.bfloat16) * 0.05)(B, Hkv, Sk, Dh)),
            "wq": _w((lambda *s: torch.randn(*s, dtype=torch.bfloat16) * 6.4)(D, Hq * Dh) * (D ** -0.5)),
            "wo": _w((lambda *s: torch.randn(*s, dtype=torch.bfloat16) * 0.05)(Hq * Dh, D) * ((Hq * Dh) ** -0.5)),
        }
    _A_in = _A_setup()

    def _B_setup():
        B, S, Dm, Df = 4, 1, 640, 1728
        return {
            "x": _w((lambda *s: torch.randn(*s, dtype=torch.bfloat16) * 0.05)(B, S, Dm)),
            "w_gate": _w((lambda *s: torch.randn(*s, dtype=torch.bfloat16) * 0.8)(Dm, Df) * (Dm ** -0.5)),
            "w_up": _w((lambda *s: torch.randn(*s, dtype=torch.bfloat16) * 0.8)(Dm, Df) * (Dm ** -0.5)),
            "w_down": _w((lambda *s: torch.randn(*s, dtype=torch.bfloat16) * 0.8)(Df, Dm) * (Df ** -0.5)),
        }
    _B_in = _B_setup()

    return {
        "A_x": _A_in["x"],
        "A_k_cache": _A_in["k_cache"],
        "A_v_cache": _A_in["v_cache"],
        "A_wq": _A_in["wq"],
        "A_wo": _A_in["wo"],
        "B_x": _B_in["x"],
        "B_w_gate": _B_in["w_gate"],
        "B_w_up": _B_in["w_up"],
        "B_w_down": _B_in["w_down"],
        "gate_w": _w((lambda *s: torch.randn(*s, dtype=torch.bfloat16) * 0.05)(640) * 16.0),
    }

def reference(A_x, A_k_cache, A_v_cache, A_wq, A_wo, B_x, B_w_gate, B_w_up, B_w_down, gate_w):
    def _A_ref(x, k_cache, v_cache, wq, wo):
        B, Sq, D = x.shape
        Hq, Dh = 32, 128
        Hkv, Sk = k_cache.shape[1], k_cache.shape[2]
        W = min(4096, max(256, Sk // 4))
        rep = Hq // Hkv
        q = (lambda x, *d: x.permute(*d))((x @ wq).reshape(B, Sq, Hq, Dh), 0, 2, 1, 3)
        k = (lambda x, n, axis: torch.repeat_interleave(x, n, dim=axis))(k_cache[:, :, Sk - W:, :], rep, axis=1)
        v = (lambda x, n, axis: torch.repeat_interleave(x, n, dim=axis))(v_cache[:, :, Sk - W:, :], rep, axis=1)
        scores = torch.einsum("bhqd,bhkd->bhqk", q, k) * (Dh ** -0.5)
        p = _softmax(scores, axis=-1)
        o = torch.einsum("bhqk,bhkd->bhqd", p, v)
        return (lambda x, *d: x.permute(*d))(o, 0, 2, 1, 3).reshape(B, Sq, Hq * Dh) @ wo

    def _B_ref(x, w_gate, w_up, w_down):
        g = torch.einsum("bsd,df->bsf", x, w_gate)
        u = torch.einsum("bsd,df->bsf", x, w_up)
        h = _gelu(g) * u
        return torch.einsum("bsf,fd->bsd", h, w_down)

    x = A_x
    g = _sigmoid((x * gate_w).sum(-1, keepdims=True))
    a = _A_ref(x, A_k_cache, A_v_cache, A_wq, A_wo)
    b = _B_ref(x, B_w_gate, B_w_up, B_w_down)
    return g * a + (1 - g) * b
```

```python
import re

def _regs(op):
    op = op.strip()
    op = re.sub(r"^-|^abs\(|\)$|^\||\|$", "", op)
    op = op.strip()
    m = re.fullmatch(r"([vsa])(\d+)", op)
    if m: return [(m.group(1), int(m.group(2)))]
    m = re.fullmatch(r"([vsa])\[(\d+):(\d+)\]", op)
    if m: return [(m.group(1), i) for i in range(int(m.group(2)), int(m.group(3)) + 1)]
    if op in ("vcc", "vcc_lo", "vcc_hi"): return [("s", "vcc")]
    if op in ("exec", "exec_lo", "exec_hi"): return [("s", "exec")]
    if op == "m0": return [("s", "m0")]
    return []

TRANS = ("v_exp_", "v_log_", "v_rcp_", "v_rsq_", "v_sqrt_", "v_sin_", "v_cos_")

class Ins:
    __slots__ = ("mn", "kind", "w", "r", "srcC", "dtuple", "sdata", "pos", "dpp", "trans", "ab", "lanesel")

def parse(text):
    t = text.split(";")[0].strip()
    parts = t.split(None, 1)
    mn = parts[0]
    rest = parts[1] if len(parts) > 1 else ""
    ops = [o.strip() for o in rest.split(",")] if rest else []
    if ops:
        last = ops[-1].split()
        ops[-1] = last[0] if last else ""
        mods = " ".join(last[1:])
    else:
        mods = ""
    I = Ins(); I.mn = mn; I.w = []; I.r = []; I.srcC = []; I.dtuple = None; I.sdata = []; I.dpp = False; I.trans = False; I.ab = []; I.lanesel = []
    R = [_regs(o) for o in ops]
    flat = lambda L: [x for l in L for x in l]
    if mn.startswith("v_mfma"):
        I.kind = "mfma"; I.w = R[0]; I.r = flat(R[1:]); I.srcC = R[3]; I.ab = R[1] + R[2]; I.dtuple = tuple(R[0])
    elif mn.startswith("v_"):
        I.kind = "valu"
        I.trans = mn.startswith(TRANS)
        I.dpp = ("_dpp" in mn) or mn.startswith("v_permlane")
        if mn.startswith("v_cmp"):
            I.w = R[0]; I.r = flat(R[1:])
        elif re.match(r"v_(add|sub|subrev)_co_u32|v_(addc|subb|subbrev)_co_u32|v_mad_u64_u32|v_div_scale", mn):
            I.w = R[0] + R[1]; I.r = flat(R[2:])
        elif mn.startswith("v_permlane") or mn.startswith("v_swap"):
            I.w = R[0] + R[1]; I.r = R[0] + R[1]
        elif mn.startswith(("v_fmac", "v_dot2c", "v_pk_fmac", "v_writelane")):
            I.w = R[0]; I.r = flat(R)
        else:
            I.w = R[0]; I.r = flat(R[1:])
        if mn.startswith(("v_readlane", "v_writelane")) and len(R) > 2:
            I.lanesel = R[2]
        if "_dpp" in mn:
            I.r = I.r + R[0]
    elif mn.startswith(("buffer_load", "global_load")):
        I.kind = "vmem"
        if " lds" in (" " + mods) or "_lds_" in mn:
            I.r = flat(R)
        else:
            I.w = R[0]; I.r = flat(R[1:])
    elif mn.startswith(("buffer_store", "buffer_atomic")):
        I.kind = "vmem"; I.r = flat(R)
        if len(R[0]) >= 3: I.sdata = R[0]
        if mn.startswith("buffer_atomic") and "sc0" in mods: I.w = R[0]
    elif mn.startswith(("global_store", "global_atomic")):
        I.kind = "vmem"; I.r = flat(R)
        if len(R[1]) >= 3: I.sdata = R[1]
    elif mn.startswith("ds_"):
        I.kind = "ds"
        if mn.startswith(("ds_read", "ds_bpermute", "ds_permute", "ds_swizzle")) or "_rtn" in mn:
            I.w = R[0]; I.r = flat(R[1:])
        else:
            I.r = flat(R)
    elif mn.startswith("s_"):
        I.kind = "salu"
        if mn.startswith(("s_cmp", "s_cbranch", "s_branch", "s_waitcnt", "s_nop", "s_barrier", "s_sleep", "s_setprio", "s_endpgm", "s_bitcmp")):
            I.r = flat(R)
        else:
            I.w = R[0] if R else []; I.r = flat(R[1:])
    else:
        raise ValueError("unknown instruction " + text)
    return I

def need(P, C):
    n = 0
    Pw = set(P.w); Cr = set(C.r); Cw = set(C.w)
    pv = {x for x in Pw if x[0] in "va"}
    ps = {x for x in Pw if x[0] == "s"}
    if P.kind == "valu":
        if C.kind == "mfma" and pv & Cr: n = max(n, 2)
        if P.trans and pv & Cr: n = max(n, 1)
        if C.kind == "valu" and C.mn.startswith(("v_readfirstlane", "v_readlane")) and pv & Cr: n = max(n, 1)
        if C.kind == "valu" and C.dpp and pv & Cr: n = max(n, 2)
        if ps:
            if C.kind == "valu" and ps & Cr: n = max(n, 2)
            if C.kind == "valu" and ps & set(C.lanesel): n = max(n, 4)
            if C.kind == "vmem" and ps & Cr: n = max(n, 5)
            if C.kind == "salu" and ps & Cr: n = max(n, 1)
            if C.kind == "salu" and C.mn.startswith("s_cbranch_vcc") and ("s", "vcc") in ps: n = max(n, 5)
            if ("s", "exec") in ps: n = max(n, 5)
    if P.kind == "mfma":
        passes = 8 if "32x32" in P.mn else 4
        big = {4: 8, 8: 12}[passes]; ovl = {4: 6, 8: 10}[passes]; war = {4: 3, 8: 7}[passes]
        if C.kind == "mfma":
            if pv & set(C.ab): n = max(n, big)
            if pv & set(C.srcC):
                if tuple(C.srcC) == P.dtuple and C.mn == P.mn: pass
                else: n = max(n, ovl)
            elif pv & Cw and tuple(C.w) != P.dtuple: n = max(n, ovl)
        else:
            if pv & (Cr | Cw): n = max(n, big)
            if C.kind in ("valu",) and set(P.srcC) & Cw: n = max(n, war)
            if C.kind in ("vmem", "ds") and (set(P.r) & Cw): n = max(n, big)
    if P.kind == "vmem" and P.sdata:
        if set(P.sdata) & Cw: n = max(n, 2)
    if P.kind == "salu" and ("s", "m0") in Pw and C.kind in ("vmem", "ds"): n = max(n, 1)
    return n

def worst(P):
    if P.kind == "mfma": return 12 if "32x32" in P.mn else 8
    if P.kind == "valu":
        return 5 if any(x[0] == "s" for x in P.w) else 2
    if P.kind == "vmem" and P.sdata: return 2
    return 0

class Asm:
    def __init__(self):
        self.lines = []; self.hist = []; self.pos = 0; self.vm = []; self.uid = 0; self.maxv = 0; self.maxs = 0
    def raw(self, t): self.lines.append(t)
    def comment(self, t): self.lines.append("    ; " + t)
    def nop(self, n):
        while n > 0:
            k = min(n, 16)
            self.lines.append(f"    s_nop {k-1}"); self.pos += k; n -= k
    def flush(self):
        n = 0
        for P in self.hist:
            n = max(n, worst(P) - (self.pos - P.pos - 1))
        self.nop(n)
        self.hist = []
    def __call__(self, text, tag=None):
        C = parse(text)
        if C.mn.startswith(("s_branch", "s_cbranch", "s_setpc")):
            n = 0
            for P in self.hist:
                n = max(n, worst(P) - 1 - (self.pos - P.pos - 1), need(P, C) - (self.pos - P.pos - 1))
            self.nop(n)
        else:
            n = 0
            for P in self.hist:
                d = self.pos - P.pos - 1
                n = max(n, need(P, C) - d)
            self.nop(n)
        C.pos = self.pos
        self.lines.append("    " + text)
        if C.mn == "s_nop":
            self.pos += int(text.split()[1], 0) + 1
        else:
            self.pos += 1
        self.hist.append(C)
        self.hist = [h for h in self.hist if self.pos - h.pos <= 14]
        for x in C.w + C.r:
            if x[0] == "v": self.maxv = max(self.maxv, x[1] + 1)
            if x[0] == "s" and isinstance(x[1], int): self.maxs = max(self.maxs, x[1] + 1)
        if C.kind == "vmem":
            self.vm.append(tag)
    def label(self, name):
        self.flush()
        self.lines.append(name + ":")
    def newlabel(self, base="L"):
        self.uid += 1
        return f"{base}_{self.uid}"
    def vm_reset(self): self.vm = []
    def wait_vm(self, tag):
        idx = max(i for i, t in enumerate(self.vm) if t == tag)
        n = len(self.vm) - 1 - idx
        assert n <= 63
        self(f"s_waitcnt vmcnt({n})")
        self.vm = self.vm[idx + 1:]
    def wait_vm_all(self):
        self("s_waitcnt vmcnt(0)"); self.vm = []
    def text(self): return "\n".join(self.lines) + "\n"
```

```python
import sys
from asmdsl import Asm
KN = "gated_mix__sliding_block_cached__glu_gated_geglu__decode"

QP_OFF = 0x100000
GP_OFF = 0x200000
SP_OFF = 0x300000
FP_OFF = 0x400000
WS_SIZE = 0x600000
F_Q, F_S, F_P, F_O, F_H, F_A, F_PUB, F_KI = 0, 4, 8, 12, 16, 20, 24, 28
L_TW, L_G, L_OMG = 32, 40, 44
QB, HB, SB, PB, OP, AP = 0x100, 0x200, 0x400, 0x800, 0x1000, 0x1800
LDS_BYTES = AP + 6 * 2560
SPIN_LIMIT = 400000
POLL_LIMIT = 40000

def gen(name, stamps=False, wflags="nt", s1flags="nt", prio=True, qdelay=0, rotmul=5, wo_prio=0, v_prio=1, warm=False, dbgq=False, kburst=1, vburst=1, wburst=1, gu_first=False, slp=1, pollsleep=0, nocheck=False, nowo=False, nogu=False, klin=False, nocomm=False, nost=False, nold=False, stf='sc1', ldf='sc1', kvf='nt'):
    A = Asm()
    hdr = open("cdna_kernels/" + KN + ".s.ref").read().split("\n")
    for l in hdr:
        if l.startswith(";") and "@launch" not in l: A.raw(l)
        if not l.startswith(";"): break
    A.raw(f"; @launch grid=(256,1,1) block=(768,1,1) lds={LDS_BYTES}")
    A.raw('.amdgcn_target "amdgcn-amd-amdhsa--gfx950"')
    A.raw(".text")
    A.raw(f".globl {KN}_kernel")
    A.raw(".p2align 8")
    A.raw(f".type {KN}_kernel,@function")
    A.raw(f"{KN}_kernel:")

    _A = A
    class Wrap:
        def __getattr__(self, k): return getattr(_A, k)
        def __call__(self, text, tag=None):
            if "s[52:55]" in text and text.startswith("buffer_store") and text.endswith("sc1"):
                if nost: return
                text = text[:-3] + stf
            if "s[52:55]" in text and text.startswith("buffer_load") and text.endswith("sc1"):
                if nold: return
                text = text[:-3] + ldf
            _A(text, tag)
    A = Wrap()
    X, K, V, WQ, WO, WG, WU, WD, GW, OUT, DBG, WS = 16, 18, 20, 22, 24, 28, 30, 32, 34, 36, 38, 40
    sB, sI, sH, sHALF, sBH, sR, sRHO, sT = "s4", "s5", "s6", "s7", "s8", "s9", "s10", "s11"
    st = {"n": 0, "slots": []}
    def stamp(slot, q=True):
        if not stamps: return
        if dbgq and st.get("role") != "q" and slot in (7, 9, 10, 11, 12): return
        k = 80 + 2 * st["n"]; st["n"] += 1; st["slots"].append((slot, k))
        assert k + 1 <= 101
        A(f"s_memrealtime s[{k}:{k+1}]")
    def stamp_reset():
        st["n"] = 0; st["slots"] = []
    def stamp_flush():
        if not stamps or not st["slots"]: return
        A("s_waitcnt lgkmcnt(0)")
        A(f"s_add_u32 s72, s{WS}, 0x10000000")
        A(f"s_addc_u32 s73, s{WS+1}, 0")
        A("s_mov_b32 s74, 0x100000")
        A("s_mov_b32 s75, 0x20000")
        A("s_lshl_b32 s76, s2, 8")
        A("s_mov_b64 exec, 1")
        for slot, k in st["slots"]:
            A(f"v_mov_b32 v4, s{k}")
            A(f"v_mov_b32 v5, s{k+1}")
            A(f"buffer_store_dwordx2 v[4:5], v2, s[72:75], s76 offen offset:{slot*8}")
        A("s_mov_b64 exec, -1")
        stamp_reset()

    def srd(d, base, off_lo=None, size=None, off_hi=None):
        if nocomm and base == WS: size = 0
        if off_lo is None:
            A(f"s_mov_b32 s{d}, s{base}")
            A(f"s_mov_b32 s{d+1}, s{base+1}")
        else:
            A(f"s_add_u32 s{d}, s{base}, {off_lo}")
            A(f"s_addc_u32 s{d+1}, s{base+1}, {off_hi if off_hi is not None else 0}")
        A(f"s_mov_b32 s{d+2}, {size}")
        A(f"s_mov_b32 s{d+3}, 0x20000")

    def setexec(mask):
        lo = mask & 0xffffffff; hi = mask >> 32
        A(f"s_mov_b32 exec_lo, {lo:#x}")
        A(f"s_mov_b32 exec_hi, {hi:#x}")

    def spin(flag, val, code, sleep=None, vt="v1"):
        if sleep is None: sleep = slp
        L = A.newlabel("L_spin"); D = A.newlabel("L_spind")
        A("s_mov_b32 s61, 0")
        A.label(L)
        A(f"ds_read_b32 {vt}, v2 offset:{flag}")
        A("s_waitcnt lgkmcnt(0)")
        A(f"v_readfirstlane_b32 s60, {vt}")
        A(f"s_cmp_ge_u32 s60, {val}")
        A(f"s_cbranch_scc1 {D}")
        if sleep: A(f"s_sleep {sleep}")
        A("s_add_u32 s61, s61, 1")
        A(f"s_cmp_lt_u32 s61, {SPIN_LIMIT}")
        A(f"s_cbranch_scc1 {L}")
        A(f"s_mov_b32 s62, {code}")
        A("s_branch L_fail")
        A.label(D)

    def bump(flag, vone="v1"):
        A(f"v_mov_b32 {vone}, 1")
        A("s_mov_b64 exec, 1")
        A(f"ds_add_u32 v2, {vone} offset:{flag}")
        A("s_mov_b64 exec, -1")

    def make_sel(base, t0, t1, t2):
        A(f"v_and_b32 {t0}, 1, v0")
        A(f"v_cmp_eq_u32 vcc, 1, {t0}")
        A(f"v_mov_b32 {t1}, 0x0c0c0100")
        A(f"v_mov_b32 {t2}, 0x01000c0c")
        A(f"v_cndmask_b32 {t1}, {t1}, {t2}, vcc")
        A(f"v_mov_b32 {t0}, 0x0c0c0302")
        A(f"v_mov_b32 {t2}, 0x03020c0c")
        A(f"v_cndmask_b32 {t2}, {t0}, {t2}, vcc")
        A(f"v_bfe_u32 {t0}, v0, 1, 2")
        for j in range(4):
            A(f"v_cmp_eq_u32 vcc, {j}, {t0}")
            A(f"v_mov_b32 v{base+j}, 0x0c0c0c0c")
            A(f"v_mov_b32 v{base+4+j}, 0x0c0c0c0c")
            A(f"v_cndmask_b32 v{base+j}, v{base+j}, {t1}, vcc")
            A(f"v_cndmask_b32 v{base+4+j}, v{base+4+j}, {t2}, vcc")

    def tagcheck(tagregs, t0, t1, retry_label, code, cnt="s61", sleep=0):
        regs = list(tagregs)
        if nocheck: return
        A(f"v_min_u32 {t0}, {regs[0]}, {regs[1]}")
        A(f"v_max_u32 {t1}, {regs[0]}, {regs[1]}")
        for k in range(2, len(regs), 2):
            A(f"v_min3_u32 {t0}, {t0}, {regs[k]}, {regs[k+1]}")
            A(f"v_max3_u32 {t1}, {t1}, {regs[k]}, {regs[k+1]}")
        A(f"v_cmp_ne_u32 vcc, {sT}, {t0}")
        A(f"v_cmp_ne_u32 s[64:65], {sT}, {t1}")
        D = A.newlabel("L_tagok")
        A("s_or_b64 s[64:65], s[64:65], vcc")
        A("s_cmp_eq_u64 s[64:65], 0")
        A(f"s_cbranch_scc1 {D}")
        if sleep: A(f"s_sleep {sleep}")
        A(f"s_add_u32 {cnt}, {cnt}, 1")
        A(f"s_cmp_lt_u32 {cnt}, {POLL_LIMIT}")
        A(f"s_cbranch_scc1 {retry_label}")
        A(f"s_mov_b32 s62, {code}")
        A("s_branch L_fail")
        A.label(D)

    def rowreduce(op, v, t):
        for sh in (1, 2, 4, 8):
            A(f"{op}_dpp {v}, {v}, {v} row_ror:{sh} row_mask:0xf bank_mask:0xf")
        xreduce(op, v, t, 16); xreduce(op, v, t, 32)
    def xreduce(op, v, t, w):
        A(f"v_mov_b32 {t}, {v}")
        A(f"v_permlane{w}_swap_b32 {v}, {t}")
        A(f"{op} {v}, {v}, {t}")

    def load_tag():
        A(f"s_load_dword s12, s[{WS}:{WS+1}], 0")
    def make_tag():
        A("s_waitcnt lgkmcnt(0)")
        A(f"s_mul_i32 {sT}, s12, 1664525")
        A(f"s_add_u32 {sT}, {sT}, 1013904223")

    A("s_cmp_ge_u32 s2, 256")
    A("s_cbranch_scc1 L_exit")
    A("s_load_dwordx16 s[16:31], s[0:1], 0")
    A("s_load_dwordx8 s[32:39], s[0:1], 64")
    A("s_load_dwordx2 s[40:41], s[0:1], 96")
    if stamps: A("s_memrealtime s[78:79]")
    A("v_lshrrev_b32 v1, 6, v0")
    A("v_and_b32 v0, 63, v0")
    A("v_mov_b32 v2, 0")
    A("v_readfirstlane_b32 s3, v1")
    A(f"s_lshr_b32 {sB}, s2, 6")
    A(f"s_and_b32 {sI}, s2, 63")
    A(f"s_lshr_b32 {sH}, {sI}, 1")
    A(f"s_and_b32 {sHALF}, {sI}, 1")
    A(f"s_lshl_b32 {sBH}, {sB}, 5")
    A(f"s_add_u32 {sBH}, {sBH}, {sH}")
    A(f"s_lshl_b32 {sR}, {sB}, 1")
    A(f"s_add_u32 {sR}, {sR}, {sHALF}")
    A(f"s_lshr_b32 {sRHO}, {sBH}, 2")
    A(f"s_and_b32 s12, {sBH}, 3")
    A(f"s_lshl_b32 s12, s12, 3")
    A(f"s_add_u32 {sRHO}, {sRHO}, s12")
    A(f"s_and_b32 {sRHO}, {sRHO}, 31")
    A("s_cmp_lg_u32 s3, 11")
    A("s_cbranch_scc1 L_noinit")
    A("v_lshlrev_b32 v1, 2, v0")
    A("ds_write_b32 v1, v2")
    A("s_waitcnt lgkmcnt(0)")
    A.label("L_noinit")
    A("s_barrier")
    A("s_waitcnt lgkmcnt(0)")
    A("s_cmp_eq_u32 s3, 0")
    A("s_cbranch_scc1 L_Q")
    A("s_barrier")
    A("s_cmp_lt_u32 s3, 5")
    A("s_cbranch_scc1 L_K")
    A("s_cmp_eq_u32 s3, 5")
    A("s_cbranch_scc1 L_GU")
    A("s_cmp_lt_u32 s3, 10")
    A("s_cbranch_scc1 L_V")
    A("s_branch L_D")

    SEL, XR, AR, DR, WR, PR = 8, 16, 36, 52, 60, 140
    def stage1(kind):
        A.vm_reset()
        A("v_lshrrev_b32 v3, 4, v0")
        A("v_and_b32 v4, 15, v0")
        srd(44, X, size=5120)
        A("v_bfe_u32 v5, v0, 3, 1")
        A("v_mul_u32_u24 v5, 1280, v5")
        A("v_mul_u32_u24 v6, 40, v3")
        A(f"s_mul_i32 s60, {sR}, 160")
        A("v_add3_u32 v5, v5, v6, s60")
        if kind == "q":
            A(f"s_lshl_b32 s60, {sH}, 8")
            A("s_sub_u32 s61, 0x500000, s60")
            srd(48, WQ, "s60", "s61")
            A("v_mul_u32_u24 v6, 20, v3")
            A(f"s_mul_i32 s60, {sR}, 80")
            A("v_add_u32 v6, s60, v6")
            A("v_lshlrev_b32 v6, 13, v6")
            A("v_lshl_add_u32 v6, v4, 4, v6")
        else:
            A("v_mul_u32_u24 v6, 20, v3")
            A(f"s_mul_i32 s60, {sR}, 80")
            A("v_add_u32 v6, s60, v6")
            A("s_movk_i32 s60, 3456")
            A("v_mul_lo_u32 v6, v6, s60")
            A("v_and_b32 v7, 7, v0")
            A("v_lshl_add_u32 v6, v7, 4, v6")
            A(f"s_lshl_b32 s60, {sH}, 7")
            A("v_add_u32 v156, s60, v6")
            A("v_mov_b32 v157, 0")
            A("v_bfe_u32 v7, v0, 3, 1")
            A("v_cmp_eq_u32 vcc, 1, v7")
            A(f"v_mov_b32 v158, s{WG}")
            A(f"v_mov_b32 v159, s{WG+1}")
            A(f"v_mov_b32 v6, s{WU}")
            A(f"v_mov_b32 v7, s{WU+1}")
            A("v_cndmask_b32 v158, v158, v6, vcc")
            A("v_cndmask_b32 v159, v159, v7, vcc")
            A("v_lshl_add_u64 v[156:157], v[156:157], 0, v[158:159]")
            A("s_movk_i32 s66, 6912")
            A("s_mov_b32 s67, 0")
        if dbgq and kind == "q": stamp(11)
        if kind == "gu" and not gu_first: spin(F_KI, 4, 12)
        if kind == "gu": stamp(20)
        for beta in range(2):
            xb = XR + 10 * beta
            A(f"buffer_load_dwordx4 v[{xb}:{xb+3}], v5, s[44:47], 0 offen offset:{2560*beta}", "x")
            A(f"buffer_load_dwordx4 v[{xb+4}:{xb+7}], v5, s[44:47], 0 offen offset:{2560*beta+16}", "x")
            A(f"buffer_load_dwordx2 v[{xb+8}:{xb+9}], v5, s[44:47], 0 offen offset:{2560*beta+32}", "x")
        if dbgq and kind == "q": stamp(7)
        for t in range(20):
            w = WR + 4 * t
            if dbgq and kind == "q" and t in (1, 5, 10): stamp({1: 9, 5: 10, 10: 12}[t])
            if kind == "q":
                if t == 0:
                    A(f"buffer_load_dwordx4 v[{w}:{w+3}], v6, s[48:51], 0 offen {s1flags}", f"w{t}")
                else:
                    A(f"s_mov_b32 s60, {t*8192}")
                    A(f"buffer_load_dwordx4 v[{w}:{w+3}], v6, s[48:51], s60 offen {s1flags}", f"w{t}")
            else:
                A(f"global_load_dwordx4 v[{w}:{w+3}], v[156:157], off offset:{3456*(t&1)} {s1flags}", f"w{t}")
                if t & 1 and t != 19:
                    A("v_lshl_add_u64 v[156:157], v[156:157], 0, s[66:67]")
        if kind == "q": A("s_barrier")
        else: bump(F_KI, "v7")
        load_tag()
        make_sel(SEL, "v5", "v6", "v7")
        srd(52, WS, size=WS_SIZE)
        make_tag()
        for k in range(8):
            A(f"v_mov_b32 v{PR+2*k+1}, {sT}")
        A("v_lshrrev_b32 v5, 1, v3")
        A("v_lshlrev_b32 v5, 13, v5")
        A("v_lshl_add_u32 v5, v4, 6, v5")
        A("v_and_b32 v6, 1, v3")
        A("v_lshl_add_u32 v5, v6, 5, v5")
        off = QP_OFF if kind == "q" else GP_OFF
        A(f"s_lshl_b32 s60, {sH}, 15")
        A(f"s_lshl_b32 s61, {sR}, 10")
        A("s_add_u32 s60, s60, s61")
        A(f"s_add_u32 s68, s60, {off}")
        A(f"s_add_u32 s69, s68, 16384")
        A.wait_vm("x")
        for t in range(20):
            w = WR + 4 * t
            for beta in range(2):
                a = AR + 8 * (t & 1) + 4 * beta
                xd = XR + 10 * beta + (t >> 1)
                for j in range(4):
                    A(f"v_perm_b32 v{a+j}, v{xd}, v{xd}, v{SEL + 4*(t&1) + j}")
            A.wait_vm(f"w{t}")
            if t == 19 and kind == "q": stamp(13)

            for beta in range(2):
                a = AR + 8 * (t & 1) + 4 * beta
                d = DR + 4 * beta
                c = "0" if t == 0 else f"v[{d}:{d+3}]"
                A(f"v_mfma_f32_16x16x32_bf16 v[{d}:{d+3}], v[{a}:{a+3}], v[{w}:{w+3}], {c}")
        for beta in range(2):
            for r in range(4):
                A(f"v_mov_b32 v{PR + 8*beta + 2*r}, v{DR + 4*beta + r}")
        for beta in range(2):
            p = PR + 8 * beta
            so = "s68" if beta == 0 else "s69"
            A(f"buffer_store_dwordx4 v[{p}:{p+3}], v5, s[52:55], {so} offen sc1", "pub")
            A(f"buffer_store_dwordx4 v[{p+4}:{p+7}], v5, s[52:55], {so} offen offset:16 sc1", "pub")

    A.label("L_Q")
    stamp_reset(); st["role"] = "q"
    if prio: A("s_setprio 3")
    stage1("q")
    stamp(2)
    A("v_lshlrev_b32 v5, 4, v0")
    A(f"s_lshl_b32 s60, {sH}, 15")
    A(f"s_lshl_b32 s61, {sB}, 13")
    A("s_add_u32 s60, s60, s61")
    A(f"s_add_u32 s68, s60, {QP_OFF}")
    A("s_add_u32 s69, s68, 4096")
    if qdelay: A(f"s_sleep {qdelay}")
    A("s_mov_b32 s61, 0")
    A.label("L_qpoll")
    G = 60
    for r in range(8):
        so = "s68" if r < 4 else "s69"
        A(f"buffer_load_dwordx4 v[{G+4*r}:{G+4*r+3}], v5, s[52:55], {so} offen offset:{(r&3)*1024} sc1")
    A.wait_vm_all()
    tagcheck([f"v{G+4*r+1+2*k}" for r in range(8) for k in range(2)], "v6", "v7", "L_qpoll", 1, sleep=pollsleep)
    for r in range(1, 8):
        A(f"v_add_f32 v{G}, v{G}, v{G+4*r}")
        A(f"v_add_f32 v{G+2}, v{G+2}, v{G+4*r+2}")
    A(f"v_cvt_pk_bf16_f32 v6, v{G}, v{G+2}")
    A("v_lshlrev_b32 v7, 2, v0")
    A(f"ds_write_b32 v7, v6 offset:{QB}")
    A(f"v_mov_b32 v6, {sT}")
    A(f"ds_write_b32 v2, v6 offset:{L_TW}")
    bump(F_Q)
    stamp(3)
    A(f"s_xor_b32 s60, {sHALF}, 1")
    A(f"s_lshl_b32 s61, {sBH}, 1")
    A("s_add_u32 s60, s60, s61")
    A("s_lshl_b32 s60, s60, 11")
    A(f"s_add_u32 s68, s60, {SP_OFF}")
    spin(F_S, 4, 2)
    stamp(23)
    A(f"ds_read_b128 v[60:63], v5 offset:{SB}")
    A("s_mov_b32 s61, 0")
    A.label("L_spoll")
    A("buffer_load_dwordx4 v[64:67], v5, s[52:55], s68 offen sc1")
    A("buffer_load_dwordx4 v[68:71], v5, s[52:55], s68 offen offset:1024 sc1")
    A.wait_vm_all()
    tagcheck(["v65", "v67", "v69", "v71"], "v6", "v7", "L_spoll", 3, sleep=pollsleep)
    stamp(5)
    A("s_waitcnt lgkmcnt(0)")
    src = ["v60", "v61", "v62", "v63", "v64", "v66", "v68", "v70"]
    E = 72
    for k, s in enumerate(src):
        A(f"v_lshlrev_b32 v{E+2*k}, 16, {s}")
        A(f"v_and_b32 v{E+2*k+1}, 0xffff0000, {s}")
    A(f"v_max_f32 v6, v{E}, v{E+1}")
    for k in range(2, 16, 2):
        A(f"v_max3_f32 v6, v6, v{E+k}, v{E+k+1}")
    rowreduce("v_max_f32", "v6", "v7")
    A("s_mov_b32 s60, 0x3fb8aa3b")
    for k in range(16):
        A(f"v_sub_f32 v{E+k}, v{E+k}, v6")
    for k in range(16):
        A(f"v_mul_f32 v{E+k}, s60, v{E+k}")
    for k in range(16):
        A(f"v_exp_f32 v{E+k}, v{E+k}")
    A(f"v_add_f32 v6, v{E}, v{E+1}")
    A(f"v_add_f32 v7, v{E+2}, v{E+3}")
    for k in range(4, 16, 2):
        A(f"v_add_f32 v6, v6, v{E+k}")
        A(f"v_add_f32 v7, v7, v{E+k+1}")
    A("v_add_f32 v6, v6, v7")
    rowreduce("v_add_f32", "v6", "v7")
    A("v_rcp_f32 v6, v6")
    for k in range(16):
        A(f"v_mul_f32 v{E+k}, v{E+k}, v6")
    for k in range(8):
        A(f"v_cvt_pk_bf16_f32 v{60+k}, v{E+2*k}, v{E+2*k+1}")
    A(f"s_lshl_b32 s60, {sHALF}, 10")
    A("v_add_u32 v6, s60, v5")
    A(f"ds_write_b128 v6, v[60:63] offset:{PB}")
    A("s_xor_b32 s60, s60, 1024")
    A("v_lshlrev_b32 v6, 3, v0")
    A("v_add_u32 v6, s60, v6")
    A(f"ds_write_b64 v6, v[64:65] offset:{PB}")
    A(f"ds_write_b64 v6, v[66:67] offset:{PB+512}")
    bump(F_P)
    stamp(6)
    A(f"s_cmp_ge_u32 {sI}, 40")
    A("s_cbranch_scc1 L_Qend")
    A(f"s_mul_i32 s60, {sB}, 40")
    A(f"s_add_u32 s60, s60, {sI}")
    A("s_lshl_b32 s60, s60, 13")
    A(f"s_add_u32 s68, s60, {FP_OFF}")
    A("s_add_u32 s69, s68, 4096")
    srd(44, OUT, size=5120)
    spin(F_PUB, 4, 4)
    stamp(22)
    A("s_mov_b32 s61, 0")
    A.label("L_fpoll")
    for m in range(8):
        so = "s68" if m < 4 else "s69"
        A(f"buffer_load_dwordx4 v[{G+4*m}:{G+4*m+3}], v5, s[52:55], {so} offen offset:{(m&3)*1024} sc1")
    A.wait_vm_all()
    tagcheck([f"v{G+4*r+1+2*k}" for r in range(8) for k in range(2)], "v6", "v7", "L_fpoll", 5)
    for r in range(1, 8):
        A(f"v_add_f32 v{G}, v{G}, v{G+4*r}")
        A(f"v_add_f32 v{G+2}, v{G+2}, v{G+4*r+2}")
    for v in (f"v{G}", f"v{G+2}"):
        A(f"v_add_f32_dpp {v}, {v}, {v} row_ror:8 row_mask:0xf bank_mask:0xf")
    A(f"v_mov_b32 v6, v{G}")
    A(f"v_mov_b32 v7, v{G+2}")
    A(f"v_permlane16_swap_b32 v{G}, v6")
    A(f"v_permlane16_swap_b32 v{G+2}, v7")
    A(f"v_add_f32 v{G}, v{G}, v6")
    A(f"v_add_f32 v{G+2}, v{G+2}, v7")
    A(f"v_mov_b32 v6, v{G}")
    A(f"v_mov_b32 v7, v{G+2}")
    A(f"v_permlane32_swap_b32 v{G}, v6")
    A(f"v_permlane32_swap_b32 v{G+2}, v7")
    A(f"v_add_f32 v{G}, v{G}, v6")
    A(f"v_add_f32 v{G+2}, v{G+2}, v7")
    A(f"v_cvt_pk_bf16_f32 v6, v{G}, v{G+2}")
    A("v_lshlrev_b32 v7, 2, v0")
    A(f"s_mul_i32 s60, {sB}, 1280")
    A(f"s_lshl_b32 s61, {sI}, 5")
    A("s_add_u32 s60, s60, s61")
    setexec(0xff)
    A("buffer_store_dword v6, v7, s[44:47], s60 offen")
    A("s_mov_b64 exec, -1")
    A("s_cmp_lg_u32 s2, 0")
    A("s_cbranch_scc1 L_Qend")
    A(f"v_mov_b32 v6, {sT}")
    A("s_mov_b64 exec, 1")
    A("buffer_store_dword v6, v2, s[52:55], 0 offen")
    A("s_mov_b64 exec, -1")
    A.label("L_Qend")
    if stamps:
        stamp(1)
        st["slots"].append((0, 78))
        stamp_flush()
    A("s_endpgm")

    PW, PACC, PA = 32, 112, 16
    def proj_loads(srdreg, flags):
        if nowo: A(f"s_mov_b32 s{srdreg+2}, 0")
        A("v_lshrrev_b32 v3, 4, v0")
        A("v_mul_u32_u24 v3, 5120, v3")
        A("v_and_b32 v4, 15, v0")
        A("v_lshl_add_u32 v3, v4, 4, v3")
        A("s_movk_i32 s63, 3840")
        for u in range(4):
            for seg in range(5):
                w = PW + 4 * (5 * u + seg)
                if u < 3:
                    A(f"buffer_load_dwordx4 v[{w}:{w+3}], v3, s[{srdreg}:{srdreg+3}], 0 offen offset:{u*1280+seg*256} {flags}", f"p{u}_{seg}")
                else:
                    A(f"buffer_load_dwordx4 v[{w}:{w+3}], v3, s[{srdreg}:{srdreg+3}], s63 offen offset:{seg*256} {flags}", f"p{u}_{seg}")
                if (5 * u + seg + 1) % wburst == 0: A("s_nop 0")
    def proj_mfma(o01, o23, slot_sgpr):
        for u in range(4):
            a = PA + 4 * (u & 1)
            srcd = o01 if u < 2 else o23
            for j in range(4):
                A(f"v_perm_b32 v{a+j}, {srcd}, {srcd}, v{8 + 4*(u&1) + j}")
            for seg in range(5):
                w = PW + 4 * (5 * u + seg)
                d = PACC + 4 * seg
                A.wait_vm(f"p{u}_{seg}")
                c = "0" if u == 0 else f"v[{d}:{d+3}]"
                A(f"v_mfma_f32_16x16x32_bf16 v[{d}:{d+3}], v[{a}:{a+3}], v[{w}:{w+3}], {c}")
        A("v_and_b32 v4, 15, v0")
        A("v_lshlrev_b32 v4, 5, v4")
        A("v_lshrrev_b32 v5, 4, v0")
        A("v_lshl_add_u32 v4, v5, 4, v4")
        A(f"v_add_u32 v4, {slot_sgpr}, v4")
        setexec(0xffffffff)
        for seg in range(5):
            d = PACC + 4 * seg
            A(f"ds_write_b128 v4, v[{d}:{d+3}] offset:{AP + seg*512}")
        A("s_mov_b64 exec, -1")

    A.label("L_K")
    stamp_reset(); A.vm_reset(); st["role"] = "k"
    if prio: A("s_setprio 2")
    A("s_sub_u32 s13, s3, 1")
    A(f"s_lshl_b32 s60, {sBH}, 20")
    A(f"s_lshr_b32 s61, {sBH}, 12")
    A(f"s_lshl_b32 s62, {sHALF}, 17")
    A("s_add_u32 s62, s62, 0xC0000")
    A("s_add_u32 s60, s60, s62")
    A("s_addc_u32 s61, s61, 0")
    srd(44, K, "s60", 0x20000, "s61")
    A("v_and_b32 v3, 15, v0")
    A("v_lshlrev_b32 v3, 8, v3")
    A("v_lshrrev_b32 v4, 4, v0")
    A("v_lshl_add_u32 v3, v4, 4, v3")
    if klin: A("v_lshlrev_b32 v3, 4, v0")
    A("s_lshl_b32 s62, s13, 3")
    A(f"s_add_u32 s62, s62, {sRHO}")
    KR = 32
    stamp(24)
    for T in range(8):
        A(f"s_add_u32 s60, s62, {T}")
        A("s_and_b32 s60, s60, 31")
        A("s_lshl_b32 s60, s60, 12")
        for j in range(4):
            w = KR + 16 * T + 4 * j
            A(f"buffer_load_dwordx4 v[{w}:{w+3}], v3, s[44:47], s60 offen offset:{(1024 if klin else 64)*j} {kvf}", f"k{T}_{j}")
            if (j + 1) % kburst == 0 and j != 3: A("s_nop 0")
    bump(F_KI)
    stamp(14)
    srd(52, WS, size=WS_SIZE)
    A("v_lshlrev_b32 v4, 4, v4")
    spin(F_Q, 1, 6)
    for j in range(4):
        A(f"ds_read_b128 v[{8+4*j}:{8+4*j+3}], v4 offset:{QB + 64*j}")
    A(f"ds_read_b32 v5, v2 offset:{L_TW}")
    A("s_waitcnt lgkmcnt(0)")
    Dt = [24, 28, 160, 164, 32, 36, 40, 44]
    for T in range(8):
        for j in range(4):
            w = KR + 16 * T + 4 * j
            d = Dt[T]
            A.wait_vm(f"k{T}_{j}")
            if T == 7 and j == 3: stamp(8)
            c = "0" if j == 0 else f"v[{d}:{d+3}]"
            A(f"v_mfma_f32_16x16x32_bf16 v[{d}:{d+3}], v[{8+4*j}:{8+4*j+3}], v[{w}:{w+3}], {c}")
    A("s_mov_b32 s64, 0xffff0000")
    A("s_mov_b32 s65, 0xffff0000")
    A("s_mov_b32 s66, 0")
    A("s_mov_b32 s67, -1")
    for grp, dst in ((0, "v6"), (1, "v7")):
        d = Dt[4 * grp: 4 * grp + 4]
        A(f"v_cndmask_b32 v{d[0]}, v{d[0]}, v{d[1]}, s[64:65]")
        A(f"v_cndmask_b32 v{d[2]}, v{d[2]}, v{d[3]}, s[64:65]")
        A(f"v_cndmask_b32 {dst}, v{d[0]}, v{d[2]}, s[66:67]")
    A("v_cvt_pk_bf16_f32 v6, v6, v7")
    A("v_and_b32 v7, 0xffff0000, v6")
    A("v_lshlrev_b32 v6, 16, v6")
    A("s_mov_b32 s60, 0x3db504f3")
    A("v_mul_f32 v6, s60, v6")
    A("v_mul_f32 v7, s60, v7")
    A("v_cvt_pk_bf16_f32 v4, v6, v7")
    A("v_and_b32 v6, 7, v0")
    A("v_lshlrev_b32 v6, 3, v6")
    A("v_lshrrev_b32 v7, 3, v0")
    A("v_add_u32 v6, v6, v7")
    A("s_lshl_b32 s60, s13, 6")
    A("v_add_u32 v6, s60, v6")
    A("v_lshlrev_b32 v7, 3, v6")
    A(f"s_lshl_b32 s60, {sBH}, 1")
    A(f"s_add_u32 s60, s60, {sHALF}")
    A("s_lshl_b32 s60, s60, 11")
    A(f"s_add_u32 s60, s60, {SP_OFF}")
    A("buffer_store_dwordx2 v[4:5], v7, s[52:55], s60 offen sc1", "sp")
    A("v_lshlrev_b32 v6, 2, v6")
    A(f"ds_write_b32 v6, v4 offset:{SB}")
    bump(F_S)
    stamp(4)
    A("v_readfirstlane_b32 s11, v5")
    if prio: A(f"s_setprio {wo_prio}")
    A(f"s_lshl_b32 s60, {sH}, 7")
    A(f"s_lshl_b32 s61, {sHALF}, 6")
    A("s_add_u32 s60, s60, s61")
    A("s_lshl_b32 s61, s13, 4")
    A("s_add_u32 s60, s60, s61")
    A("s_mul_i32 s60, s60, 1280")
    srd(48, WO, "s60", 20480)
    proj_loads(48, wflags)
    stamp(17)
    if prio: A("s_setprio 3")
    make_sel(8, "v5", "v6", "v7")
    A("v_lshrrev_b32 v5, 4, v0")
    A("v_lshlrev_b32 v5, 4, v5")
    A("s_lshl_b32 s60, s13, 6")
    A("v_add_u32 v5, s60, v5")
    A("s_mul_i32 s14, s13, 2560")
    spin(F_O, 4, 7, sleep=0)
    stamp(16)
    for p in range(8):
        A(f"ds_read_b128 v[{132+4*p}:{132+4*p+3}], v5 offset:{OP + 256*p}")
    A("s_waitcnt lgkmcnt(0)")
    for step in (4, 2, 1):
        for p in range(step):
            for r in range(4):
                A(f"v_add_f32 v{132+4*p+r}, v{132+4*p+r}, v{132+4*(p+step)+r}")
    A("v_cvt_pk_bf16_f32 v24, v132, v133")
    A("v_cvt_pk_bf16_f32 v25, v134, v135")
    proj_mfma("v24", "v25", "s14")
    bump(F_A)
    stamp(10)
    A("v_lshlrev_b32 v5, 4, v0")
    A("s_mul_i32 s60, s13, 640")
    A("v_add_u32 v5, s60, v5")
    A("v_lshrrev_b32 v6, 2, v0")
    A("s_mul_i32 s60, s13, 10")
    A("v_add_u32 v6, s60, v6")
    A("v_lshlrev_b32 v6, 13, v6")
    A("v_and_b32 v7, 3, v0")
    A("v_lshl_add_u32 v6, v7, 5, v6")
    A(f"s_mul_i32 s68, {sB}, {40*8192}")
    A(f"s_lshl_b32 s60, {sI}, 7")
    A("s_add_u32 s68, s68, s60")
    A(f"s_add_u32 s68, s68, {FP_OFF}")
    for k in range(4):
        A(f"v_mov_b32 v{65+2*k}, {sT}")
    spin(F_A, 6, 8, sleep=0)
    stamp(18)
    setexec(0xffffffffff)
    for s in range(6):
        A(f"ds_read_b128 v[{32+4*s}:{32+4*s+3}], v5 offset:{AP + 2560*s}")
    A(f"ds_read_b64 v[56:57], v2 offset:{L_G}")
    A("s_waitcnt lgkmcnt(0)")
    for r in range(4):
        A(f"v_add_f32 v{32+r}, v{32+r}, v{36+r}")
        A(f"v_add_f32 v{40+r}, v{40+r}, v{44+r}")
        A(f"v_add_f32 v{48+r}, v{48+r}, v{52+r}")
    for r in range(4):
        A(f"v_add_f32 v{32+r}, v{32+r}, v{40+r}")
        A(f"v_mul_f32 v{48+r}, v{48+r}, v57")
    for r in range(4):
        A(f"v_fma_f32 v{64+2*r}, v{32+r}, v56, v{48+r}")
    A("buffer_store_dwordx4 v[64:67], v6, s[52:55], s68 offen sc1")
    A("buffer_store_dwordx4 v[68:71], v6, s[52:55], s68 offen offset:16 sc1")
    A("s_mov_b64 exec, -1")
    bump(F_PUB)
    stamp(11)
    if stamps:
        A("s_cmp_lg_u32 s3, 1")
        A("s_cbranch_scc1 L_exit")
        stamp_flush()
    A("s_endpgm")

    A.label("L_GU")
    stamp_reset()
    A(f"s_cmp_lt_u32 {sH}, 27")
    A("s_cbranch_scc1 L_GUwork")
    bump(F_KI)
    A("s_endpgm")
    A.label("L_GUwork")
    if prio: A("s_setprio 2")
    stage1("gu")
    if prio: A("s_setprio 3")
    stamp(21)
    A("v_lshrrev_b32 v5, 4, v0")
    A("v_lshlrev_b32 v5, 10, v5")
    A("v_and_b32 v6, 15, v0")
    A("v_lshl_add_u32 v5, v6, 4, v5")
    A(f"s_lshl_b32 s60, {sH}, 15")
    A(f"s_lshl_b32 s61, {sB}, 13")
    A("s_add_u32 s60, s60, s61")
    A(f"s_lshl_b32 s61, {sHALF}, 8")
    A("s_add_u32 s60, s60, s61")
    A(f"s_add_u32 s68, s60, {GP_OFF}")
    A("s_add_u32 s69, s68, 4096")
    A("s_mov_b32 s61, 0")
    A.label("L_gpoll")
    A("buffer_load_dwordx4 v[60:63], v5, s[52:55], s68 offen sc1")
    A("buffer_load_dwordx4 v[64:67], v5, s[52:55], s68 offen offset:512 sc1")
    A("buffer_load_dwordx4 v[68:71], v5, s[52:55], s69 offen sc1")
    A("buffer_load_dwordx4 v[72:75], v5, s[52:55], s69 offen offset:512 sc1")
    A.wait_vm_all()
    tagcheck([f"v{61+2*k}" for k in range(8)], "v6", "v7", "L_gpoll", 9, sleep=4)
    A("v_add_f32 v60, v60, v68")
    A("v_add_f32 v62, v62, v70")
    A("v_add_f32 v64, v64, v72")
    A("v_add_f32 v66, v66, v74")
    for v in ("v60", "v62", "v64", "v66"):
        xreduce("v_add_f32", v, "v6", 16)
        xreduce("v_add_f32", v, "v6", 32)
    A("v_cvt_pk_bf16_f32 v60, v60, v62")
    A("v_cvt_pk_bf16_f32 v64, v64, v66")
    A("v_and_b32 v62, 0xffff0000, v60")
    A("v_lshlrev_b32 v60, 16, v60")
    A("v_and_b32 v66, 0xffff0000, v64")
    A("v_lshlrev_b32 v64, 16, v64")
    import math, struct
    f2u = lambda f: struct.unpack("<I", struct.pack("<f", f))[0]
    kk = -2.0 * math.sqrt(2.0 / math.pi) * math.log2(math.e)
    A(f"s_mov_b32 s60, {f2u(0.044715):#x}")
    A(f"s_mov_b32 s61, {f2u(kk):#x}")
    for x, t in (("v60", "v68"), ("v62", "v69")):
        A(f"v_mul_f32 {t}, {x}, {x}")
        A(f"v_mul_f32 {t}, {t}, {x}")
        A(f"v_fma_f32 {t}, {t}, s60, {x}")
        A(f"v_mul_f32 {t}, s61, {t}")
        A(f"v_exp_f32 {t}, {t}")
        A(f"v_add_f32 {t}, 1.0, {t}")
        A(f"v_rcp_f32 {t}, {t}")
        A(f"v_mul_f32 {x}, {x}, {t}")
    A("v_cvt_pk_bf16_f32 v60, v60, v62")
    A("v_and_b32 v62, 0xffff0000, v60")
    A("v_lshlrev_b32 v60, 16, v60")
    A("v_mul_f32 v60, v60, v64")
    A("v_mul_f32 v62, v62, v66")
    A("v_cvt_pk_bf16_f32 v60, v60, v62")
    A("v_lshlrev_b32 v6, 2, v0")
    setexec(0xffff)
    A(f"ds_write_b32 v6, v60 offset:{HB}")
    A("s_mov_b64 exec, -1")
    bump(F_H)
    stamp(12)
    stamp_flush()
    A("s_endpgm")

    A.label("L_V")
    stamp_reset(); A.vm_reset()
    if prio: A(f"s_setprio {v_prio}")
    A("s_sub_u32 s13, s3, 6")
    A(f"s_lshl_b32 s60, {sBH}, 20")
    A(f"s_lshr_b32 s61, {sBH}, 12")
    A(f"s_lshl_b32 s62, {sHALF}, 7")
    A("s_add_u32 s62, s62, 0xC0000")
    A("s_add_u32 s60, s60, s62")
    A("s_addc_u32 s61, s61, 0")
    srd(44, V, "s60", 0x40000 - 128, "s61")
    A("v_lshrrev_b32 v3, 3, v0")
    A("v_lshlrev_b32 v4, 5, v3")
    A("v_lshlrev_b32 v3, 8, v3")
    A("v_and_b32 v5, 7, v0")
    A("v_lshl_add_u32 v3, v5, 4, v3")
    A("s_and_b32 s62, s13, 1")
    A("s_lshl_b32 s62, s62, 4")
    A(f"s_add_u32 s62, s62, {sRHO}")
    A("s_lshr_b32 s63, s13, 1")
    A("s_lshl_b32 s63, s63, 17")
    VR = 32
    order = []
    A("s_mov_b32 s15, s62")
    spin(F_KI, 5, 13)
    A("s_mov_b32 s62, s15")
    stamp(19)
    for kk in range(2):
        for T in range(8):
            A(f"s_add_u32 s60, s62, {8*kk+T}")
            A("s_and_b32 s60, s60, 31")
            A("s_lshl_b32 s60, s60, 12")
            A("s_add_u32 s60, s60, s63")
            for u1 in range(2):
                n = len(order)
                w = VR + 4 * n
                par = T >> 2; u = 2 * (T & 3) + u1
                order.append((kk, par, u))
                A(f"buffer_load_dwordx4 v[{w}:{w+3}], v3, s[44:47], s60 offen offset:{2048*u1} {kvf}", f"v{n}")
                if vburst == 1 and u1 == 0: A("s_nop 0")
    stamp(15)
    if prio: A("s_setprio 3")
    make_sel(8, "v5", "v6", "v7")
    A("s_lshl_b32 s14, s13, 9")
    A("v_add_u32 v3, s14, v4")
    spin(F_P, 1, 10)
    for kk in range(2):
        for hh in range(2):
            p = 16 + 8 * kk + 4 * hh
            A(f"ds_read_b128 v[{p}:{p+3}], v3 offset:{PB + 256*kk + 16*hh}")
    A("s_waitcnt lgkmcnt(0)")
    for n, (kk, par, u) in enumerate(order):
        w = VR + 4 * n
        a = 160 + 4 * (n & 1)
        pd = 16 + 8 * kk + u
        for j in range(4):
            A(f"v_perm_b32 v{a+j}, v{pd}, v{pd}, v{8 + 4*par + j}")
        A.wait_vm(f"v{n}")
        if n == 31: stamp(9)
        c = "0" if n == 0 else "v[4:7]"
        A(f"v_mfma_f32_16x16x32_bf16 v[4:7], v[{a}:{a+3}], v[{w}:{w+3}], {c}")
    A("v_and_b32 v8, 7, v0")
    A("v_lshlrev_b32 v8, 5, v8")
    A("v_bfe_u32 v9, v0, 4, 1")
    A("v_lshl_add_u32 v8, v9, 4, v8")
    A("v_lshrrev_b32 v9, 5, v0")
    A("v_lshl_add_u32 v8, v9, 8, v8")
    A("v_add_u32 v8, s14, v8")
    A("s_mov_b32 exec_lo, 0x00ff00ff")
    A("s_mov_b32 exec_hi, 0xff00ff00")
    A(f"ds_write_b128 v8, v[4:7] offset:{OP}")
    A("s_mov_b64 exec, -1")
    bump(F_O)
    stamp(7)
    if stamps:
        A("s_cmp_lg_u32 s3, 6")
        A("s_cbranch_scc1 L_exit")
        stamp_flush()
    A("s_endpgm")

    A.label("L_D")
    stamp_reset(); A.vm_reset()
    A("s_sub_u32 s13, s3, 10")
    A("s_cmp_lg_u32 s13, 0")
    A("s_cbranch_scc1 L_nogate")
    A(f"s_mul_i32 s60, {sB}, 1280")
    srd(44, X, "s60", 1280)
    srd(48, GW, size=1280)
    A("v_lshlrev_b32 v3, 5, v0")
    A("buffer_load_dwordx4 v[8:11], v3, s[44:47], 0 offen")
    A("buffer_load_dwordx4 v[12:15], v3, s[44:47], 0 offen offset:16")
    A("buffer_load_dwordx4 v[16:19], v3, s[48:51], 0 offen")
    A("buffer_load_dwordx4 v[20:23], v3, s[48:51], 0 offen offset:16")
    A.wait_vm_all()
    A("v_mov_b32 v4, 0")
    for k in range(8):
        A(f"v_lshlrev_b32 v24, 16, v{8+k}")
        A(f"v_and_b32 v25, 0xffff0000, v{8+k}")
        A(f"v_lshlrev_b32 v26, 16, v{16+k}")
        A(f"v_and_b32 v27, 0xffff0000, v{16+k}")
        A("v_mul_f32 v24, v24, v26")
        A("v_mul_f32 v25, v25, v27")
        A("v_cvt_pk_bf16_f32 v24, v24, v25")
        A("v_and_b32 v25, 0xffff0000, v24")
        A("v_lshlrev_b32 v24, 16, v24")
        A("v_add_f32 v4, v4, v24")
        A("v_add_f32 v4, v4, v25")
    rowreduce("v_add_f32", "v4", "v5")
    A("v_cvt_pk_bf16_f32 v4, v4, v4")
    A("v_lshlrev_b32 v4, 16, v4")
    A("v_mul_f32 v4, 0xbfb8aa3b, v4")
    A("v_exp_f32 v4, v4")
    A("v_add_f32 v4, 1.0, v4")
    A("v_rcp_f32 v4, v4")
    A("v_cvt_pk_bf16_f32 v4, v4, v4")
    A("v_lshlrev_b32 v4, 16, v4")
    A("v_sub_f32 v5, 1.0, v4")
    A("v_cvt_pk_bf16_f32 v5, v5, v5")
    A("v_lshlrev_b32 v5, 16, v5")
    A("s_mov_b64 exec, 1")
    A(f"ds_write_b64 v2, v[4:5] offset:{L_G}")
    A("s_mov_b64 exec, -1")
    A.label("L_nogate")
    A.vm_reset()
    A("s_add_u32 s14, s13, 4")
    A("s_mul_i32 s14, s14, 2560")
    A(f"s_cmp_lt_u32 {sH}, 27")
    A("s_cbranch_scc1 L_Dwork")
    for k in range(4): A(f"v_mov_b32 v{8+k}, 0")
    A("v_lshlrev_b32 v4, 4, v0")
    A("v_add_u32 v4, s14, v4")
    A(f"ds_write_b128 v4, v[8:11] offset:{AP}")
    A(f"ds_write_b128 v4, v[8:11] offset:{AP+1024}")
    setexec(0xffffffff)
    A(f"ds_write_b128 v4, v[8:11] offset:{AP+2048}")
    A("s_mov_b64 exec, -1")
    bump(F_A)
    A("s_endpgm")
    A.label("L_Dwork")
    A(f"s_lshl_b32 s60, {sI}, 5")
    A("s_lshl_b32 s61, s13, 4")
    A("s_add_u32 s60, s60, s61")
    A("s_mul_i32 s60, s60, 1280")
    srd(48, WD, "s60", 20480)
    spin(F_KI, 5, 14)
    proj_loads(48, wflags)
    make_sel(8, "v5", "v6", "v7")
    A("v_lshrrev_b32 v5, 4, v0")
    A("v_lshlrev_b32 v5, 3, v5")
    A("s_lshl_b32 s60, s13, 5")
    A("v_add_u32 v5, s60, v5")
    spin(F_H, 1, 11)
    A(f"ds_read_b64 v[24:25], v5 offset:{HB}")
    A("s_waitcnt lgkmcnt(0)")
    proj_mfma("v24", "v25", "s14")
    bump(F_A)
    A("s_endpgm")

    A.label("L_fail")
    srd(44, DBG, size=256)
    A("s_lshl_b32 s60, s62, 2")
    A("v_mov_b32 v1, 1")
    A("s_mov_b64 exec, 1")
    A("buffer_atomic_add v1, v2, s[44:47], s60 offen")
    A.label("L_exit")
    A("s_endpgm")

    nv = (A.maxv + 7) // 8 * 8
    assert nv <= 168, nv
    A.raw('.section .rodata,"a"')
    A.raw(".p2align 6")
    A.raw(f".amdhsa_kernel {KN}_kernel")
    A.raw(f"  .amdhsa_next_free_vgpr {nv}")
    A.raw(f"  .amdhsa_next_free_sgpr {102}")
    A.raw(f"  .amdhsa_accum_offset {nv}")
    A.raw("  .amdhsa_group_segment_fixed_size 0")
    A.raw("  .amdhsa_kernarg_size 104")
    A.raw("  .amdhsa_user_sgpr_count 2")
    A.raw("  .amdhsa_user_sgpr_kernarg_segment_ptr 1")
    A.raw("  .amdhsa_system_sgpr_workgroup_id_x 1")
    A.raw(".end_amdhsa_kernel")
    open(name, "w").write(A.text())
    return A

if __name__ == "__main__":
    kw = dict(kburst=4, vburst=2, wo_prio=1)
    gen("t_a.s", **kw)
    gen("t_b.s", kvf="", **kw)
    gen("t_c.s", kvf="", wflags="", s1flags="", **kw)
    gen("t_d.s", wflags="", s1flags="", **kw)
```

```python
import sys
from asmdsl import Asm
KN = "gated_mix__sliding_block_cached__glu_gated_geglu__decode"

QP_OFF = 0x100000
GP_OFF = 0x200000
SP_OFF = 0x300000
FP_OFF = 0x400000
WS_SIZE = 0x600000
F_Q, F_S, F_P, F_O, F_H, F_A, F_PUB, F_KI = 0, 4, 8, 12, 16, 20, 24, 28
L_TW, L_G, L_OMG = 32, 40, 44
QB, HB, SB, PB, OP, AP = 0x100, 0x200, 0x400, 0x800, 0x1000, 0x1800
LDS_BYTES = AP + 6 * 2560
SPIN_LIMIT = 400000
POLL_LIMIT = 40000

def gen(name, stamps=False, wflags="nt", s1flags="nt", prio=True, qdelay=0, rotmul=5, wo_prio=0, v_prio=1, warm=False, dbgq=False, kburst=1, vburst=1, wburst=1, gu_first=False, slp=1, pollsleep=0, nocheck=False, nowo=False, nogu=False, klin=False, nocomm=False, nost=False, nold=False, stf='sc1', ldf='sc1', kvf='nt', dbgst=False):
    A = Asm()
    hdr = open("cdna_kernels/" + KN + ".s.ref").read().split("\n")
    for l in hdr:
        if l.startswith(";") and "@launch" not in l: A.raw(l)
        if not l.startswith(";"): break
    A.raw(f"; @launch grid=(256,1,1) block=(768,1,1) lds={LDS_BYTES}")
    A.raw('.amdgcn_target "amdgcn-amd-amdhsa--gfx950"')
    A.raw(".text")
    A.raw(f".globl {KN}_kernel")
    A.raw(".p2align 8")
    A.raw(f".type {KN}_kernel,@function")
    A.raw(f"{KN}_kernel:")

    _A = A
    class Wrap:
        def __getattr__(self, k): return getattr(_A, k)
        def __call__(self, text, tag=None):
            if "s[52:55]" in text and text.startswith("buffer_store") and text.endswith("sc1"):
                if nost: return
                text = text[:-3] + stf
            if "s[52:55]" in text and text.startswith("buffer_load") and text.endswith("sc1"):
                if nold: return
                text = text[:-3] + ldf
            _A(text, tag)
    A = Wrap()
    X, K, V, WQ, WO, WG, WU, WD, GW, OUT, DBG, WS = 16, 18, 20, 22, 24, 28, 30, 32, 34, 36, 38, 40
    sB, sI, sH, sHALF, sBH, sR, sRHO, sT = "s4", "s5", "s6", "s7", "s8", "s9", "s10", "s11"
    st = {"n": 0, "slots": []}
    def stamp(slot, q=True):
        if not stamps: return
        if dbgq and st.get("role") != "q" and slot in (7, 9, 10, 11, 12): return
        k = 80 + 2 * st["n"]; st["n"] += 1; st["slots"].append((slot, k))
        assert k + 1 <= 101
        A(f"s_memrealtime s[{k}:{k+1}]")
    def stamp_reset():
        st["n"] = 0; st["slots"] = []
    def stamp_flush():
        if not stamps or not st["slots"]: return
        A("s_waitcnt lgkmcnt(0)")
        if dbgst:
            dmap = {1: 1, 3: 2, 23: 3, 6: 4, 16: 5, 11: 6, 13: 7, 0: 8, 24: 9, 2: 10, 14: 11, 15: 12, 12: 13, 5: 14, 19: 15}
            A(f"s_mov_b32 s72, s{DBG}")
            A(f"s_mov_b32 s73, s{DBG+1}")
            A("s_mov_b32 s74, 256")
            A("s_mov_b32 s75, 0x20000")
            A("s_mov_b64 exec, 1")
            for slot, k in st["slots"]:
                if slot in dmap:
                    A(f"v_mov_b32 v4, s{k}")
                    A(f"buffer_atomic_umax v4, v2, s[72:75], 0 offen offset:{dmap[slot]*4}")
                if slot == 0:
                    A(f"s_not_b32 s76, s{k}")
                    A(f"v_mov_b32 v5, s76")
                    A(f"buffer_atomic_umax v5, v2, s[72:75], 0 offen offset:0")
            A("s_mov_b64 exec, -1")
            stamp_reset()
            return
        A(f"s_add_u32 s72, s{WS}, 0x10000000")
        A(f"s_addc_u32 s73, s{WS+1}, 0")
        A("s_mov_b32 s74, 0x100000")
        A("s_mov_b32 s75, 0x20000")
        A("s_lshl_b32 s76, s2, 8")
        A("s_mov_b64 exec, 1")
        for slot, k in st["slots"]:
            A(f"v_mov_b32 v4, s{k}")
            A(f"v_mov_b32 v5, s{k+1}")
            A(f"buffer_store_dwordx2 v[4:5], v2, s[72:75], s76 offen offset:{slot*8}")
        A("s_mov_b64 exec, -1")
        stamp_reset()

    def srd(d, base, off_lo=None, size=None, off_hi=None):
        if nocomm and base == WS: size = 0
        if off_lo is None:
            A(f"s_mov_b32 s{d}, s{base}")
            A(f"s_mov_b32 s{d+1}, s{base+1}")
        else:
            A(f"s_add_u32 s{d}, s{base}, {off_lo}")
            A(f"s_addc_u32 s{d+1}, s{base+1}, {off_hi if off_hi is not None else 0}")
        A(f"s_mov_b32 s{d+2}, {size}")
        A(f"s_mov_b32 s{d+3}, 0x20000")

    def setexec(mask):
        lo = mask & 0xffffffff; hi = mask >> 32
        A(f"s_mov_b32 exec_lo, {lo:#x}")
        A(f"s_mov_b32 exec_hi, {hi:#x}")

    def spin(flag, val, code, sleep=None, vt="v1"):
        if sleep is None: sleep = slp
        L = A.newlabel("L_spin"); D = A.newlabel("L_spind")
        A("s_mov_b32 s61, 0")
        A.label(L)
        A(f"ds_read_b32 {vt}, v2 offset:{flag}")
        A("s_waitcnt lgkmcnt(0)")
        A(f"v_readfirstlane_b32 s60, {vt}")
        A(f"s_cmp_ge_u32 s60, {val}")
        A(f"s_cbranch_scc1 {D}")
        if sleep: A(f"s_sleep {sleep}")
        A("s_add_u32 s61, s61, 1")
        A(f"s_cmp_lt_u32 s61, {SPIN_LIMIT}")
        A(f"s_cbranch_scc1 {L}")
        A(f"s_mov_b32 s62, {code}")
        A("s_branch L_fail")
        A.label(D)

    def bump(flag, vone="v1"):
        A(f"v_mov_b32 {vone}, 1")
        A("s_mov_b64 exec, 1")
        A(f"ds_add_u32 v2, {vone} offset:{flag}")
        A("s_mov_b64 exec, -1")

    def make_sel(base, t0, t1, t2):
        A(f"v_and_b32 {t0}, 1, v0")
        A(f"v_cmp_eq_u32 vcc, 1, {t0}")
        A(f"v_mov_b32 {t1}, 0x0c0c0100")
        A(f"v_mov_b32 {t2}, 0x01000c0c")
        A(f"v_cndmask_b32 {t1}, {t1}, {t2}, vcc")
        A(f"v_mov_b32 {t0}, 0x0c0c0302")
        A(f"v_mov_b32 {t2}, 0x03020c0c")
        A(f"v_cndmask_b32 {t2}, {t0}, {t2}, vcc")
        A(f"v_bfe_u32 {t0}, v0, 1, 2")
        for j in range(4):
            A(f"v_cmp_eq_u32 vcc, {j}, {t0}")
            A(f"v_mov_b32 v{base+j}, 0x0c0c0c0c")
            A(f"v_mov_b32 v{base+4+j}, 0x0c0c0c0c")
            A(f"v_cndmask_b32 v{base+j}, v{base+j}, {t1}, vcc")
            A(f"v_cndmask_b32 v{base+4+j}, v{base+4+j}, {t2}, vcc")

    def tagcheck(tagregs, t0, t1, retry_label, code, cnt="s61", sleep=0):
        regs = list(tagregs)
        if nocheck: return
        A(f"v_min_u32 {t0}, {regs[0]}, {regs[1]}")
        A(f"v_max_u32 {t1}, {regs[0]}, {regs[1]}")
        for k in range(2, len(regs), 2):
            A(f"v_min3_u32 {t0}, {t0}, {regs[k]}, {regs[k+1]}")
            A(f"v_max3_u32 {t1}, {t1}, {regs[k]}, {regs[k+1]}")
        A(f"v_cmp_ne_u32 vcc, {sT}, {t0}")
        A(f"v_cmp_ne_u32 s[64:65], {sT}, {t1}")
        D = A.newlabel("L_tagok")
        A("s_or_b64 s[64:65], s[64:65], vcc")
        A("s_cmp_eq_u64 s[64:65], 0")
        A(f"s_cbranch_scc1 {D}")
        if sleep: A(f"s_sleep {sleep}")
        A(f"s_add_u32 {cnt}, {cnt}, 1")
        A(f"s_cmp_lt_u32 {cnt}, {POLL_LIMIT}")
        A(f"s_cbranch_scc1 {retry_label}")
        A(f"s_mov_b32 s62, {code}")
        A("s_branch L_fail")
        A.label(D)

    def rowreduce(op, v, t):
        for sh in (1, 2, 4, 8):
            A(f"{op}_dpp {v}, {v}, {v} row_ror:{sh} row_mask:0xf bank_mask:0xf")
        xreduce(op, v, t, 16); xreduce(op, v, t, 32)
    def xreduce(op, v, t, w):
        A(f"v_mov_b32 {t}, {v}")
        A(f"v_permlane{w}_swap_b32 {v}, {t}")
        A(f"{op} {v}, {v}, {t}")

    def load_tag():
        A(f"s_load_dword s12, s[{WS}:{WS+1}], 0")
    def make_tag():
        A("s_waitcnt lgkmcnt(0)")
        A(f"s_mul_i32 {sT}, s12, 1664525")
        A(f"s_add_u32 {sT}, {sT}, 1013904223")

    A("s_cmp_ge_u32 s2, 256")
    A("s_cbranch_scc1 L_exit")
    A("s_load_dwordx16 s[16:31], s[0:1], 0")
    A("s_load_dwordx8 s[32:39], s[0:1], 64")
    A("s_load_dwordx2 s[40:41], s[0:1], 96")
    if stamps: A("s_memrealtime s[78:79]")
    A("v_lshrrev_b32 v1, 6, v0")
    A("v_and_b32 v0, 63, v0")
    A("v_mov_b32 v2, 0")
    A("v_readfirstlane_b32 s3, v1")
    A(f"s_lshr_b32 {sB}, s2, 6")
    A(f"s_and_b32 {sI}, s2, 63")
    A(f"s_lshr_b32 {sH}, {sI}, 1")
    A(f"s_and_b32 {sHALF}, {sI}, 1")
    A(f"s_lshl_b32 {sBH}, {sB}, 5")
    A(f"s_add_u32 {sBH}, {sBH}, {sH}")
    A(f"s_lshl_b32 {sR}, {sB}, 1")
    A(f"s_add_u32 {sR}, {sR}, {sHALF}")
    A(f"s_lshr_b32 {sRHO}, {sBH}, 2")
    A(f"s_and_b32 s12, {sBH}, 3")
    A(f"s_lshl_b32 s12, s12, 3")
    A(f"s_add_u32 {sRHO}, {sRHO}, s12")
    A(f"s_and_b32 {sRHO}, {sRHO}, 31")
    A("s_cmp_lg_u32 s3, 11")
    A("s_cbranch_scc1 L_noinit")
    A("v_lshlrev_b32 v1, 2, v0")
    A("ds_write_b32 v1, v2")
    A("s_waitcnt lgkmcnt(0)")
    A.label("L_noinit")
    A("s_barrier")
    A("s_waitcnt lgkmcnt(0)")
    A("s_cmp_eq_u32 s3, 0")
    A("s_cbranch_scc1 L_Q")
    A("s_barrier")
    A("s_cmp_lt_u32 s3, 5")
    A("s_cbranch_scc1 L_K")
    A("s_cmp_eq_u32 s3, 5")
    A("s_cbranch_scc1 L_GU")
    A("s_cmp_lt_u32 s3, 10")
    A("s_cbranch_scc1 L_V")
    A("s_branch L_D")

    SEL, XR, AR, DR, WR, PR = 8, 16, 36, 52, 60, 140
    def stage1(kind):
        A.vm_reset()
        A("v_lshrrev_b32 v3, 4, v0")
        A("v_and_b32 v4, 15, v0")
        srd(44, X, size=5120)
        A("v_bfe_u32 v5, v0, 3, 1")
        A("v_mul_u32_u24 v5, 1280, v5")
        A("v_mul_u32_u24 v6, 40, v3")
        A(f"s_mul_i32 s60, {sR}, 160")
        A("v_add3_u32 v5, v5, v6, s60")
        if kind == "q":
            A(f"s_lshl_b32 s60, {sH}, 8")
            A("s_sub_u32 s61, 0x500000, s60")
            srd(48, WQ, "s60", "s61")
            A("v_mul_u32_u24 v6, 20, v3")
            A(f"s_mul_i32 s60, {sR}, 80")
            A("v_add_u32 v6, s60, v6")
            A("v_lshlrev_b32 v6, 13, v6")
            A("v_lshl_add_u32 v6, v4, 4, v6")
        else:
            A("v_mul_u32_u24 v6, 20, v3")
            A(f"s_mul_i32 s60, {sR}, 80")
            A("v_add_u32 v6, s60, v6")
            A("s_movk_i32 s60, 3456")
            A("v_mul_lo_u32 v6, v6, s60")
            A("v_and_b32 v7, 7, v0")
            A("v_lshl_add_u32 v6, v7, 4, v6")
            A(f"s_lshl_b32 s60, {sH}, 7")
            A("v_add_u32 v156, s60, v6")
            A("v_mov_b32 v157, 0")
            A("v_bfe_u32 v7, v0, 3, 1")
            A("v_cmp_eq_u32 vcc, 1, v7")
            A(f"v_mov_b32 v158, s{WG}")
            A(f"v_mov_b32 v159, s{WG+1}")
            A(f"v_mov_b32 v6, s{WU}")
            A(f"v_mov_b32 v7, s{WU+1}")
            A("v_cndmask_b32 v158, v158, v6, vcc")
            A("v_cndmask_b32 v159, v159, v7, vcc")
            A("v_lshl_add_u64 v[156:157], v[156:157], 0, v[158:159]")
            A("s_movk_i32 s66, 6912")
            A("s_mov_b32 s67, 0")
        if dbgq and kind == "q": stamp(11)
        if kind == "gu" and not gu_first: spin(F_KI, 4, 12)
        if kind == "gu": stamp(20)
        for beta in range(2):
            xb = XR + 10 * beta
            A(f"buffer_load_dwordx4 v[{xb}:{xb+3}], v5, s[44:47], 0 offen offset:{2560*beta}", "x")
            A(f"buffer_load_dwordx4 v[{xb+4}:{xb+7}], v5, s[44:47], 0 offen offset:{2560*beta+16}", "x")
            A(f"buffer_load_dwordx2 v[{xb+8}:{xb+9}], v5, s[44:47], 0 offen offset:{2560*beta+32}", "x")
        if dbgq and kind == "q": stamp(7)
        for t in range(20):
            w = WR + 4 * t
            if dbgq and kind == "q" and t in (1, 5, 10): stamp({1: 9, 5: 10, 10: 12}[t])
            if kind == "q":
                if t == 0:
                    A(f"buffer_load_dwordx4 v[{w}:{w+3}], v6, s[48:51], 0 offen {s1flags}", f"w{t}")
                else:
                    A(f"s_mov_b32 s60, {t*8192}")
                    A(f"buffer_load_dwordx4 v[{w}:{w+3}], v6, s[48:51], s60 offen {s1flags}", f"w{t}")
            else:
                A(f"global_load_dwordx4 v[{w}:{w+3}], v[156:157], off offset:{3456*(t&1)} {s1flags}", f"w{t}")
                if t & 1 and t != 19:
                    A("v_lshl_add_u64 v[156:157], v[156:157], 0, s[66:67]")
        if kind == "q": A("s_barrier")
        else: bump(F_KI, "v7")
        load_tag()
        make_sel(SEL, "v5", "v6", "v7")
        srd(52, WS, size=WS_SIZE)
        make_tag()
        for k in range(8):
            A(f"v_mov_b32 v{PR+2*k+1}, {sT}")
        A("v_lshrrev_b32 v5, 1, v3")
        A("v_lshlrev_b32 v5, 13, v5")
        A("v_lshl_add_u32 v5, v4, 6, v5")
        A("v_and_b32 v6, 1, v3")
        A("v_lshl_add_u32 v5, v6, 5, v5")
        off = QP_OFF if kind == "q" else GP_OFF
        A(f"s_lshl_b32 s60, {sH}, 15")
        A(f"s_lshl_b32 s61, {sR}, 10")
        A("s_add_u32 s60, s60, s61")
        A(f"s_add_u32 s68, s60, {off}")
        A(f"s_add_u32 s69, s68, 16384")
        A.wait_vm("x")
        for t in range(20):
            w = WR + 4 * t
            for beta in range(2):
                a = AR + 8 * (t & 1) + 4 * beta
                xd = XR + 10 * beta + (t >> 1)
                for j in range(4):
                    A(f"v_perm_b32 v{a+j}, v{xd}, v{xd}, v{SEL + 4*(t&1) + j}")
            A.wait_vm(f"w{t}")
            if t == 19 and kind == "q": stamp(13)

            for beta in range(2):
                a = AR + 8 * (t & 1) + 4 * beta
                d = DR + 4 * beta
                c = "0" if t == 0 else f"v[{d}:{d+3}]"
                A(f"v_mfma_f32_16x16x32_bf16 v[{d}:{d+3}], v[{a}:{a+3}], v[{w}:{w+3}], {c}")
        for beta in range(2):
            for r in range(4):
                A(f"v_mov_b32 v{PR + 8*beta + 2*r}, v{DR + 4*beta + r}")
        for beta in range(2):
            p = PR + 8 * beta
            so = "s68" if beta == 0 else "s69"
            A(f"buffer_store_dwordx4 v[{p}:{p+3}], v5, s[52:55], {so} offen sc1", "pub")
            A(f"buffer_store_dwordx4 v[{p+4}:{p+7}], v5, s[52:55], {so} offen offset:16 sc1", "pub")

    A.label("L_Q")
    stamp_reset(); st["role"] = "q"
    if prio: A("s_setprio 3")
    stage1("q")
    stamp(2)
    A("v_lshlrev_b32 v5, 4, v0")
    A(f"s_lshl_b32 s60, {sH}, 15")
    A(f"s_lshl_b32 s61, {sB}, 13")
    A("s_add_u32 s60, s60, s61")
    A(f"s_add_u32 s68, s60, {QP_OFF}")
    A("s_add_u32 s69, s68, 4096")
    if qdelay: A(f"s_sleep {qdelay}")
    A("s_mov_b32 s61, 0")
    A.label("L_qpoll")
    G = 60
    for r in range(8):
        so = "s68" if r < 4 else "s69"
        A(f"buffer_load_dwordx4 v[{G+4*r}:{G+4*r+3}], v5, s[52:55], {so} offen offset:{(r&3)*1024} sc1")
    A.wait_vm_all()
    tagcheck([f"v{G+4*r+1+2*k}" for r in range(8) for k in range(2)], "v6", "v7", "L_qpoll", 1, sleep=pollsleep)
    for r in range(1, 8):
        A(f"v_add_f32 v{G}, v{G}, v{G+4*r}")
        A(f"v_add_f32 v{G+2}, v{G+2}, v{G+4*r+2}")
    A(f"v_cvt_pk_bf16_f32 v6, v{G}, v{G+2}")
    A("v_lshlrev_b32 v7, 2, v0")
    A(f"ds_write_b32 v7, v6 offset:{QB}")
    A(f"v_mov_b32 v6, {sT}")
    A(f"ds_write_b32 v2, v6 offset:{L_TW}")
    bump(F_Q)
    stamp(3)
    A(f"s_xor_b32 s60, {sHALF}, 1")
    A(f"s_lshl_b32 s61, {sBH}, 1")
    A("s_add_u32 s60, s60, s61")
    A("s_lshl_b32 s60, s60, 11")
    A(f"s_add_u32 s68, s60, {SP_OFF}")
    spin(F_S, 4, 2)
    stamp(23)
    A(f"ds_read_b128 v[60:63], v5 offset:{SB}")
    A("s_mov_b32 s61, 0")
    A.label("L_spoll")
    A("buffer_load_dwordx4 v[64:67], v5, s[52:55], s68 offen sc1")
    A("buffer_load_dwordx4 v[68:71], v5, s[52:55], s68 offen offset:1024 sc1")
    A.wait_vm_all()
    tagcheck(["v65", "v67", "v69", "v71"], "v6", "v7", "L_spoll", 3, sleep=pollsleep)
    stamp(5)
    A("s_waitcnt lgkmcnt(0)")
    src = ["v60", "v61", "v62", "v63", "v64", "v66", "v68", "v70"]
    E = 72
    for k, s in enumerate(src):
        A(f"v_lshlrev_b32 v{E+2*k}, 16, {s}")
        A(f"v_and_b32 v{E+2*k+1}, 0xffff0000, {s}")
    A(f"v_max_f32 v6, v{E}, v{E+1}")
    for k in range(2, 16, 2):
        A(f"v_max3_f32 v6, v6, v{E+k}, v{E+k+1}")
    rowreduce("v_max_f32", "v6", "v7")
    A("s_mov_b32 s60, 0x3fb8aa3b")
    for k in range(16):
        A(f"v_sub_f32 v{E+k}, v{E+k}, v6")
    for k in range(16):
        A(f"v_mul_f32 v{E+k}, s60, v{E+k}")
    for k in range(16):
        A(f"v_exp_f32 v{E+k}, v{E+k}")
    A(f"v_add_f32 v6, v{E}, v{E+1}")
    A(f"v_add_f32 v7, v{E+2}, v{E+3}")
    for k in range(4, 16, 2):
        A(f"v_add_f32 v6, v6, v{E+k}")
        A(f"v_add_f32 v7, v7, v{E+k+1}")
    A("v_add_f32 v6, v6, v7")
    rowreduce("v_add_f32", "v6", "v7")
    A("v_rcp_f32 v6, v6")
    for k in range(16):
        A(f"v_mul_f32 v{E+k}, v{E+k}, v6")
    for k in range(8):
        A(f"v_cvt_pk_bf16_f32 v{60+k}, v{E+2*k}, v{E+2*k+1}")
    A(f"s_lshl_b32 s60, {sHALF}, 10")
    A("v_add_u32 v6, s60, v5")
    A(f"ds_write_b128 v6, v[60:63] offset:{PB}")
    A("s_xor_b32 s60, s60, 1024")
    A("v_lshlrev_b32 v6, 3, v0")
    A("v_add_u32 v6, s60, v6")
    A(f"ds_write_b64 v6, v[64:65] offset:{PB}")
    A(f"ds_write_b64 v6, v[66:67] offset:{PB+512}")
    bump(F_P)
    stamp(6)
    A(f"s_cmp_ge_u32 {sI}, 40")
    A("s_cbranch_scc1 L_Qend")
    A(f"s_mul_i32 s60, {sB}, 40")
    A(f"s_add_u32 s60, s60, {sI}")
    A("s_lshl_b32 s60, s60, 13")
    A(f"s_add_u32 s68, s60, {FP_OFF}")
    A("s_add_u32 s69, s68, 4096")
    srd(44, OUT, size=5120)
    spin(F_PUB, 4, 4)
    stamp(22)
    A("s_mov_b32 s61, 0")
    A.label("L_fpoll")
    for m in range(8):
        so = "s68" if m < 4 else "s69"
        A(f"buffer_load_dwordx4 v[{G+4*m}:{G+4*m+3}], v5, s[52:55], {so} offen offset:{(m&3)*1024} sc1")
    A.wait_vm_all()
    tagcheck([f"v{G+4*r+1+2*k}" for r in range(8) for k in range(2)], "v6", "v7", "L_fpoll", 5)
    for r in range(1, 8):
        A(f"v_add_f32 v{G}, v{G}, v{G+4*r}")
        A(f"v_add_f32 v{G+2}, v{G+2}, v{G+4*r+2}")
    for v in (f"v{G}", f"v{G+2}"):
        A(f"v_add_f32_dpp {v}, {v}, {v} row_ror:8 row_mask:0xf bank_mask:0xf")
    A(f"v_mov_b32 v6, v{G}")
    A(f"v_mov_b32 v7, v{G+2}")
    A(f"v_permlane16_swap_b32 v{G}, v6")
    A(f"v_permlane16_swap_b32 v{G+2}, v7")
    A(f"v_add_f32 v{G}, v{G}, v6")
    A(f"v_add_f32 v{G+2}, v{G+2}, v7")
    A(f"v_mov_b32 v6, v{G}")
    A(f"v_mov_b32 v7, v{G+2}")
    A(f"v_permlane32_swap_b32 v{G}, v6")
    A(f"v_permlane32_swap_b32 v{G+2}, v7")
    A(f"v_add_f32 v{G}, v{G}, v6")
    A(f"v_add_f32 v{G+2}, v{G+2}, v7")
    A(f"v_cvt_pk_bf16_f32 v6, v{G}, v{G+2}")
    A("v_lshlrev_b32 v7, 2, v0")
    A(f"s_mul_i32 s60, {sB}, 1280")
    A(f"s_lshl_b32 s61, {sI}, 5")
    A("s_add_u32 s60, s60, s61")
    setexec(0xff)
    A("buffer_store_dword v6, v7, s[44:47], s60 offen")
    A("s_mov_b64 exec, -1")
    A("s_cmp_lg_u32 s2, 0")
    A("s_cbranch_scc1 L_Qend")
    A(f"v_mov_b32 v6, {sT}")
    A("s_mov_b64 exec, 1")
    A("buffer_store_dword v6, v2, s[52:55], 0 offen")
    A("s_mov_b64 exec, -1")
    A.label("L_Qend")
    if stamps:
        stamp(1)
        st["slots"].append((0, 78))
        stamp_flush()
    A("s_endpgm")

    PW, PACC, PA = 32, 112, 16
    def proj_loads(srdreg, flags):
        if nowo: A(f"s_mov_b32 s{srdreg+2}, 0")
        A("v_lshrrev_b32 v3, 4, v0")
        A("v_mul_u32_u24 v3, 5120, v3")
        A("v_and_b32 v4, 15, v0")
        A("v_lshl_add_u32 v3, v4, 4, v3")
        A("s_movk_i32 s63, 3840")
        for u in range(4):
            for seg in range(5):
                w = PW + 4 * (5 * u + seg)
                if u < 3:
                    A(f"buffer_load_dwordx4 v[{w}:{w+3}], v3, s[{srdreg}:{srdreg+3}], 0 offen offset:{u*1280+seg*256} {flags}", f"p{u}_{seg}")
                else:
                    A(f"buffer_load_dwordx4 v[{w}:{w+3}], v3, s[{srdreg}:{srdreg+3}], s63 offen offset:{seg*256} {flags}", f"p{u}_{seg}")
                if (5 * u + seg + 1) % wburst == 0: A("s_nop 0")
    def proj_mfma(o01, o23, slot_sgpr):
        for u in range(4):
            a = PA + 4 * (u & 1)
            srcd = o01 if u < 2 else o23
            for j in range(4):
                A(f"v_perm_b32 v{a+j}, {srcd}, {srcd}, v{8 + 4*(u&1) + j}")
            for seg in range(5):
                w = PW + 4 * (5 * u + seg)
                d = PACC + 4 * seg
                A.wait_vm(f"p{u}_{seg}")
                c = "0" if u == 0 else f"v[{d}:{d+3}]"
                A(f"v_mfma_f32_16x16x32_bf16 v[{d}:{d+3}], v[{a}:{a+3}], v[{w}:{w+3}], {c}")
        A("v_and_b32 v4, 15, v0")
        A("v_lshlrev_b32 v4, 5, v4")
        A("v_lshrrev_b32 v5, 4, v0")
        A("v_lshl_add_u32 v4, v5, 4, v4")
        A(f"v_add_u32 v4, {slot_sgpr}, v4")
        setexec(0xffffffff)
        for seg in range(5):
            d = PACC + 4 * seg
            A(f"ds_write_b128 v4, v[{d}:{d+3}] offset:{AP + seg*512}")
        A("s_mov_b64 exec, -1")

    A.label("L_K")
    stamp_reset(); A.vm_reset(); st["role"] = "k"
    if prio: A("s_setprio 2")
    A("s_sub_u32 s13, s3, 1")
    A(f"s_lshl_b32 s60, {sBH}, 20")
    A(f"s_lshr_b32 s61, {sBH}, 12")
    A(f"s_lshl_b32 s62, {sHALF}, 17")
    A("s_add_u32 s62, s62, 0xC0000")
    A("s_add_u32 s60, s60, s62")
    A("s_addc_u32 s61, s61, 0")
    srd(44, K, "s60", 0x20000, "s61")
    A("v_and_b32 v3, 15, v0")
    A("v_lshlrev_b32 v3, 8, v3")
    A("v_lshrrev_b32 v4, 4, v0")
    A("v_lshl_add_u32 v3, v4, 4, v3")
    if klin: A("v_lshlrev_b32 v3, 4, v0")
    A("s_lshl_b32 s62, s13, 3")
    A(f"s_add_u32 s62, s62, {sRHO}")
    KR = 32
    stamp(24)
    for T in range(8):
        A(f"s_add_u32 s60, s62, {T}")
        A("s_and_b32 s60, s60, 31")
        A("s_lshl_b32 s60, s60, 12")
        for j in range(4):
            w = KR + 16 * T + 4 * j
            A(f"buffer_load_dwordx4 v[{w}:{w+3}], v3, s[44:47], s60 offen offset:{(1024 if klin else 64)*j} {kvf}", f"k{T}_{j}")
            if (j + 1) % kburst == 0 and j != 3: A("s_nop 0")
    bump(F_KI)
    stamp(14)
    srd(52, WS, size=WS_SIZE)
    A("v_lshlrev_b32 v4, 4, v4")
    spin(F_Q, 1, 6)
    for j in range(4):
        A(f"ds_read_b128 v[{8+4*j}:{8+4*j+3}], v4 offset:{QB + 64*j}")
    A(f"ds_read_b32 v5, v2 offset:{L_TW}")
    A("s_waitcnt lgkmcnt(0)")
    Dt = [24, 28, 160, 164, 32, 36, 40, 44]
    for T in range(8):
        for j in range(4):
            w = KR + 16 * T + 4 * j
            d = Dt[T]
            A.wait_vm(f"k{T}_{j}")
            if T == 7 and j == 3: stamp(8)
            c = "0" if j == 0 else f"v[{d}:{d+3}]"
            A(f"v_mfma_f32_16x16x32_bf16 v[{d}:{d+3}], v[{8+4*j}:{8+4*j+3}], v[{w}:{w+3}], {c}")
    A("s_mov_b32 s64, 0xffff0000")
    A("s_mov_b32 s65, 0xffff0000")
    A("s_mov_b32 s66, 0")
    A("s_mov_b32 s67, -1")
    for grp, dst in ((0, "v6"), (1, "v7")):
        d = Dt[4 * grp: 4 * grp + 4]
        A(f"v_cndmask_b32 v{d[0]}, v{d[0]}, v{d[1]}, s[64:65]")
        A(f"v_cndmask_b32 v{d[2]}, v{d[2]}, v{d[3]}, s[64:65]")
        A(f"v_cndmask_b32 {dst}, v{d[0]}, v{d[2]}, s[66:67]")
    A("v_cvt_pk_bf16_f32 v6, v6, v7")
    A("v_and_b32 v7, 0xffff0000, v6")
    A("v_lshlrev_b32 v6, 16, v6")
    A("s_mov_b32 s60, 0x3db504f3")
    A("v_mul_f32 v6, s60, v6")
    A("v_mul_f32 v7, s60, v7")
    A("v_cvt_pk_bf16_f32 v4, v6, v7")
    A("v_and_b32 v6, 7, v0")
    A("v_lshlrev_b32 v6, 3, v6")
    A("v_lshrrev_b32 v7, 3, v0")
    A("v_add_u32 v6, v6, v7")
    A("s_lshl_b32 s60, s13, 6")
    A("v_add_u32 v6, s60, v6")
    A("v_lshlrev_b32 v7, 3, v6")
    A(f"s_lshl_b32 s60, {sBH}, 1")
    A(f"s_add_u32 s60, s60, {sHALF}")
    A("s_lshl_b32 s60, s60, 11")
    A(f"s_add_u32 s60, s60, {SP_OFF}")
    A("buffer_store_dwordx2 v[4:5], v7, s[52:55], s60 offen sc1", "sp")
    A("v_lshlrev_b32 v6, 2, v6")
    A(f"ds_write_b32 v6, v4 offset:{SB}")
    bump(F_S)
    stamp(4)
    A("v_readfirstlane_b32 s11, v5")
    if prio: A(f"s_setprio {wo_prio}")
    A(f"s_lshl_b32 s60, {sH}, 7")
    A(f"s_lshl_b32 s61, {sHALF}, 6")
    A("s_add_u32 s60, s60, s61")
    A("s_lshl_b32 s61, s13, 4")
    A("s_add_u32 s60, s60, s61")
    A("s_mul_i32 s60, s60, 1280")
    srd(48, WO, "s60", 20480)
    proj_loads(48, wflags)
    stamp(17)
    if prio: A("s_setprio 3")
    make_sel(8, "v5", "v6", "v7")
    A("v_lshrrev_b32 v5, 4, v0")
    A("v_lshlrev_b32 v5, 4, v5")
    A("s_lshl_b32 s60, s13, 6")
    A("v_add_u32 v5, s60, v5")
    A("s_mul_i32 s14, s13, 2560")
    spin(F_O, 4, 7, sleep=0)
    stamp(16)
    for p in range(8):
        A(f"ds_read_b128 v[{132+4*p}:{132+4*p+3}], v5 offset:{OP + 256*p}")
    A("s_waitcnt lgkmcnt(0)")
    for step in (4, 2, 1):
        for p in range(step):
            for r in range(4):
                A(f"v_add_f32 v{132+4*p+r}, v{132+4*p+r}, v{132+4*(p+step)+r}")
    A("v_cvt_pk_bf16_f32 v24, v132, v133")
    A("v_cvt_pk_bf16_f32 v25, v134, v135")
    proj_mfma("v24", "v25", "s14")
    bump(F_A)
    stamp(10)
    A("v_lshlrev_b32 v5, 4, v0")
    A("s_mul_i32 s60, s13, 640")
    A("v_add_u32 v5, s60, v5")
    A("v_lshrrev_b32 v6, 2, v0")
    A("s_mul_i32 s60, s13, 10")
    A("v_add_u32 v6, s60, v6")
    A("v_lshlrev_b32 v6, 13, v6")
    A("v_and_b32 v7, 3, v0")
    A("v_lshl_add_u32 v6, v7, 5, v6")
    A(f"s_mul_i32 s68, {sB}, {40*8192}")
    A(f"s_lshl_b32 s60, {sI}, 7")
    A("s_add_u32 s68, s68, s60")
    A(f"s_add_u32 s68, s68, {FP_OFF}")
    for k in range(4):
        A(f"v_mov_b32 v{65+2*k}, {sT}")
    spin(F_A, 6, 8, sleep=0)
    stamp(18)
    setexec(0xffffffffff)
    for s in range(6):
        A(f"ds_read_b128 v[{32+4*s}:{32+4*s+3}], v5 offset:{AP + 2560*s}")
    A(f"ds_read_b64 v[56:57], v2 offset:{L_G}")
    A("s_waitcnt lgkmcnt(0)")
    for r in range(4):
        A(f"v_add_f32 v{32+r}, v{32+r}, v{36+r}")
        A(f"v_add_f32 v{40+r}, v{40+r}, v{44+r}")
        A(f"v_add_f32 v{48+r}, v{48+r}, v{52+r}")
    for r in range(4):
        A(f"v_add_f32 v{32+r}, v{32+r}, v{40+r}")
        A(f"v_mul_f32 v{48+r}, v{48+r}, v57")
    for r in range(4):
        A(f"v_fma_f32 v{64+2*r}, v{32+r}, v56, v{48+r}")
    A("buffer_store_dwordx4 v[64:67], v6, s[52:55], s68 offen sc1")
    A("buffer_store_dwordx4 v[68:71], v6, s[52:55], s68 offen offset:16 sc1")
    A("s_mov_b64 exec, -1")
    bump(F_PUB)
    stamp(11)
    if stamps:
        A("s_cmp_lg_u32 s3, 1")
        A("s_cbranch_scc1 L_exit")
        stamp_flush()
    A("s_endpgm")

    A.label("L_GU")
    stamp_reset()
    A(f"s_cmp_lt_u32 {sH}, 27")
    A("s_cbranch_scc1 L_GUwork")
    bump(F_KI)
    A("s_endpgm")
    A.label("L_GUwork")
    if prio: A("s_setprio 2")
    stage1("gu")
    if prio: A("s_setprio 3")
    stamp(21)
    A("v_lshrrev_b32 v5, 4, v0")
    A("v_lshlrev_b32 v5, 10, v5")
    A("v_and_b32 v6, 15, v0")
    A("v_lshl_add_u32 v5, v6, 4, v5")
    A(f"s_lshl_b32 s60, {sH}, 15")
    A(f"s_lshl_b32 s61, {sB}, 13")
    A("s_add_u32 s60, s60, s61")
    A(f"s_lshl_b32 s61, {sHALF}, 8")
    A("s_add_u32 s60, s60, s61")
    A(f"s_add_u32 s68, s60, {GP_OFF}")
    A("s_add_u32 s69, s68, 4096")
    A("s_mov_b32 s61, 0")
    A.label("L_gpoll")
    A("buffer_load_dwordx4 v[60:63], v5, s[52:55], s68 offen sc1")
    A("buffer_load_dwordx4 v[64:67], v5, s[52:55], s68 offen offset:512 sc1")
    A("buffer_load_dwordx4 v[68:71], v5, s[52:55], s69 offen sc1")
    A("buffer_load_dwordx4 v[72:75], v5, s[52:55], s69 offen offset:512 sc1")
    A.wait_vm_all()
    tagcheck([f"v{61+2*k}" for k in range(8)], "v6", "v7", "L_gpoll", 9, sleep=4)
    A("v_add_f32 v60, v60, v68")
    A("v_add_f32 v62, v62, v70")
    A("v_add_f32 v64, v64, v72")
    A("v_add_f32 v66, v66, v74")
    for v in ("v60", "v62", "v64", "v66"):
        xreduce("v_add_f32", v, "v6", 16)
        xreduce("v_add_f32", v, "v6", 32)
    A("v_cvt_pk_bf16_f32 v60, v60, v62")
    A("v_cvt_pk_bf16_f32 v64, v64, v66")
    A("v_and_b32 v62, 0xffff0000, v60")
    A("v_lshlrev_b32 v60, 16, v60")
    A("v_and_b32 v66, 0xffff0000, v64")
    A("v_lshlrev_b32 v64, 16, v64")
    import math, struct
    f2u = lambda f: struct.unpack("<I", struct.pack("<f", f))[0]
    kk = -2.0 * math.sqrt(2.0 / math.pi) * math.log2(math.e)
    A(f"s_mov_b32 s60, {f2u(0.044715):#x}")
    A(f"s_mov_b32 s61, {f2u(kk):#x}")
    for x, t in (("v60", "v68"), ("v62", "v69")):
        A(f"v_mul_f32 {t}, {x}, {x}")
        A(f"v_mul_f32 {t}, {t}, {x}")
        A(f"v_fma_f32 {t}, {t}, s60, {x}")
        A(f"v_mul_f32 {t}, s61, {t}")
        A(f"v_exp_f32 {t}, {t}")
        A(f"v_add_f32 {t}, 1.0, {t}")
        A(f"v_rcp_f32 {t}, {t}")
        A(f"v_mul_f32 {x}, {x}, {t}")
    A("v_cvt_pk_bf16_f32 v60, v60, v62")
    A("v_and_b32 v62, 0xffff0000, v60")
    A("v_lshlrev_b32 v60, 16, v60")
    A("v_mul_f32 v60, v60, v64")
    A("v_mul_f32 v62, v62, v66")
    A("v_cvt_pk_bf16_f32 v60, v60, v62")
    A("v_lshlrev_b32 v6, 2, v0")
    setexec(0xffff)
    A(f"ds_write_b32 v6, v60 offset:{HB}")
    A("s_mov_b64 exec, -1")
    bump(F_H)
    stamp(12)
    stamp_flush()
    A("s_endpgm")

    A.label("L_V")
    stamp_reset(); A.vm_reset()
    if prio: A(f"s_setprio {v_prio}")
    A("s_sub_u32 s13, s3, 6")
    A(f"s_lshl_b32 s60, {sBH}, 20")
    A(f"s_lshr_b32 s61, {sBH}, 12")
    A(f"s_lshl_b32 s62, {sHALF}, 7")
    A("s_add_u32 s62, s62, 0xC0000")
    A("s_add_u32 s60, s60, s62")
    A("s_addc_u32 s61, s61, 0")
    srd(44, V, "s60", 0x40000 - 128, "s61")
    A("v_lshrrev_b32 v3, 3, v0")
    A("v_lshlrev_b32 v4, 5, v3")
    A("v_lshlrev_b32 v3, 8, v3")
    A("v_and_b32 v5, 7, v0")
    A("v_lshl_add_u32 v3, v5, 4, v3")
    A("s_and_b32 s62, s13, 1")
    A("s_lshl_b32 s62, s62, 4")
    A(f"s_add_u32 s62, s62, {sRHO}")
    A("s_lshr_b32 s63, s13, 1")
    A("s_lshl_b32 s63, s63, 17")
    VR = 32
    order = []
    A("s_mov_b32 s15, s62")
    spin(F_KI, 5, 13)
    A("s_mov_b32 s62, s15")
    stamp(19)
    for kk in range(2):
        for T in range(8):
            A(f"s_add_u32 s60, s62, {8*kk+T}")
            A("s_and_b32 s60, s60, 31")
            A("s_lshl_b32 s60, s60, 12")
            A("s_add_u32 s60, s60, s63")
            for u1 in range(2):
                n = len(order)
                w = VR + 4 * n
                par = T >> 2; u = 2 * (T & 3) + u1
                order.append((kk, par, u))
                A(f"buffer_load_dwordx4 v[{w}:{w+3}], v3, s[44:47], s60 offen offset:{2048*u1} {kvf}", f"v{n}")
                if vburst == 1 and u1 == 0: A("s_nop 0")
    stamp(15)
    if prio: A("s_setprio 3")
    make_sel(8, "v5", "v6", "v7")
    A("s_lshl_b32 s14, s13, 9")
    A("v_add_u32 v3, s14, v4")
    spin(F_P, 1, 10)
    for kk in range(2):
        for hh in range(2):
            p = 16 + 8 * kk + 4 * hh
            A(f"ds_read_b128 v[{p}:{p+3}], v3 offset:{PB + 256*kk + 16*hh}")
    A("s_waitcnt lgkmcnt(0)")
    for n, (kk, par, u) in enumerate(order):
        w = VR + 4 * n
        a = 160 + 4 * (n & 1)
        pd = 16 + 8 * kk + u
        for j in range(4):
            A(f"v_perm_b32 v{a+j}, v{pd}, v{pd}, v{8 + 4*par + j}")
        A.wait_vm(f"v{n}")
        if n == 31: stamp(9)
        c = "0" if n == 0 else "v[4:7]"
        A(f"v_mfma_f32_16x16x32_bf16 v[4:7], v[{a}:{a+3}], v[{w}:{w+3}], {c}")
    A("v_and_b32 v8, 7, v0")
    A("v_lshlrev_b32 v8, 5, v8")
    A("v_bfe_u32 v9, v0, 4, 1")
    A("v_lshl_add_u32 v8, v9, 4, v8")
    A("v_lshrrev_b32 v9, 5, v0")
    A("v_lshl_add_u32 v8, v9, 8, v8")
    A("v_add_u32 v8, s14, v8")
    A("s_mov_b32 exec_lo, 0x00ff00ff")
    A("s_mov_b32 exec_hi, 0xff00ff00")
    A(f"ds_write_b128 v8, v[4:7] offset:{OP}")
    A("s_mov_b64 exec, -1")
    bump(F_O)
    stamp(7)
    if stamps:
        A("s_cmp_lg_u32 s3, 6")
        A("s_cbranch_scc1 L_exit")
        stamp_flush()
    A("s_endpgm")

    A.label("L_D")
    stamp_reset(); A.vm_reset()
    A("s_sub_u32 s13, s3, 10")
    A("s_cmp_lg_u32 s13, 0")
    A("s_cbranch_scc1 L_nogate")
    A(f"s_mul_i32 s60, {sB}, 1280")
    srd(44, X, "s60", 1280)
    srd(48, GW, size=1280)
    A("v_lshlrev_b32 v3, 5, v0")
    A("buffer_load_dwordx4 v[8:11], v3, s[44:47], 0 offen")
    A("buffer_load_dwordx4 v[12:15], v3, s[44:47], 0 offen offset:16")
    A("buffer_load_dwordx4 v[16:19], v3, s[48:51], 0 offen")
    A("buffer_load_dwordx4 v[20:23], v3, s[48:51], 0 offen offset:16")
    A.wait_vm_all()
    A("v_mov_b32 v4, 0")
    for k in range(8):
        A(f"v_lshlrev_b32 v24, 16, v{8+k}")
        A(f"v_and_b32 v25, 0xffff0000, v{8+k}")
        A(f"v_lshlrev_b32 v26, 16, v{16+k}")
        A(f"v_and_b32 v27, 0xffff0000, v{16+k}")
        A("v_mul_f32 v24, v24, v26")
        A("v_mul_f32 v25, v25, v27")
        A("v_cvt_pk_bf16_f32 v24, v24, v25")
        A("v_and_b32 v25, 0xffff0000, v24")
        A("v_lshlrev_b32 v24, 16, v24")
        A("v_add_f32 v4, v4, v24")
        A("v_add_f32 v4, v4, v25")
    rowreduce("v_add_f32", "v4", "v5")
    A("v_cvt_pk_bf16_f32 v4, v4, v4")
    A("v_lshlrev_b32 v4, 16, v4")
    A("v_mul_f32 v4, 0xbfb8aa3b, v4")
    A("v_exp_f32 v4, v4")
    A("v_add_f32 v4, 1.0, v4")
    A("v_rcp_f32 v4, v4")
    A("v_cvt_pk_bf16_f32 v4, v4, v4")
    A("v_lshlrev_b32 v4, 16, v4")
    A("v_sub_f32 v5, 1.0, v4")
    A("v_cvt_pk_bf16_f32 v5, v5, v5")
    A("v_lshlrev_b32 v5, 16, v5")
    A("s_mov_b64 exec, 1")
    A(f"ds_write_b64 v2, v[4:5] offset:{L_G}")
    A("s_mov_b64 exec, -1")
    A.label("L_nogate")
    A.vm_reset()
    A("s_add_u32 s14, s13, 4")
    A("s_mul_i32 s14, s14, 2560")
    A(f"s_cmp_lt_u32 {sH}, 27")
    A("s_cbranch_scc1 L_Dwork")
    for k in range(4): A(f"v_mov_b32 v{8+k}, 0")
    A("v_lshlrev_b32 v4, 4, v0")
    A("v_add_u32 v4, s14, v4")
    A(f"ds_write_b128 v4, v[8:11] offset:{AP}")
    A(f"ds_write_b128 v4, v[8:11] offset:{AP+1024}")
    setexec(0xffffffff)
    A(f"ds_write_b128 v4, v[8:11] offset:{AP+2048}")
    A("s_mov_b64 exec, -1")
    bump(F_A)
    A("s_endpgm")
    A.label("L_Dwork")
    A(f"s_lshl_b32 s60, {sI}, 5")
    A("s_lshl_b32 s61, s13, 4")
    A("s_add_u32 s60, s60, s61")
    A("s_mul_i32 s60, s60, 1280")
    srd(48, WD, "s60", 20480)
    spin(F_KI, 5, 14)
    proj_loads(48, wflags)
    make_sel(8, "v5", "v6", "v7")
    A("v_lshrrev_b32 v5, 4, v0")
    A("v_lshlrev_b32 v5, 3, v5")
    A("s_lshl_b32 s60, s13, 5")
    A("v_add_u32 v5, s60, v5")
    spin(F_H, 1, 11)
    A(f"ds_read_b64 v[24:25], v5 offset:{HB}")
    A("s_waitcnt lgkmcnt(0)")
    proj_mfma("v24", "v25", "s14")
    bump(F_A)
    A("s_endpgm")

    A.label("L_fail")
    srd(44, DBG, size=256)
    A("s_lshl_b32 s60, s62, 2")
    A("v_mov_b32 v1, 1")
    A("s_mov_b64 exec, 1")
    A("buffer_atomic_add v1, v2, s[44:47], s60 offen")
    A.label("L_exit")
    A("s_endpgm")

    nv = (A.maxv + 7) // 8 * 8
    assert nv <= 168, nv
    A.raw('.section .rodata,"a"')
    A.raw(".p2align 6")
    A.raw(f".amdhsa_kernel {KN}_kernel")
    A.raw(f"  .amdhsa_next_free_vgpr {nv}")
    A.raw(f"  .amdhsa_next_free_sgpr {102}")
    A.raw(f"  .amdhsa_accum_offset {nv}")
    A.raw("  .amdhsa_group_segment_fixed_size 0")
    A.raw("  .amdhsa_kernarg_size 104")
    A.raw("  .amdhsa_user_sgpr_count 2")
    A.raw("  .amdhsa_user_sgpr_kernarg_segment_ptr 1")
    A.raw("  .amdhsa_system_sgpr_workgroup_id_x 1")
    A.raw(".end_amdhsa_kernel")
    open(name, "w").write(A.text())
    return A

if __name__ == "__main__":
    kw = dict(kburst=4, vburst=2, wo_prio=1)
    gen("t_a.s", stamps=True, dbgst=True, **kw)
```

```python
import sys, math, struct
from asmdsl import Asm
KN = "gated_mix__sliding_block_cached__glu_gated_geglu__decode"
f2u = lambda f: struct.unpack("<I", struct.pack("<f", f))[0]

QP_OFF = 0x100000
GP_OFF = 0x180000
SP_OFF = 0x200000
FP_OFF = 0x280000
WS_SIZE = 0x400000
F_Q, F_S, F_P, F_O, F_H, F_A, F_PUB, F_KI = 0, 4, 8, 12, 16, 20, 24, 28
L_TW, L_G, L_OMG = 32, 40, 44
QB, HB, SB, PB, OP, AP = 0x100, 0x200, 0x400, 0x800, 0x1000, 0x1800
LDS_BYTES = AP + 6 * 2560
SPIN_LIMIT = 400000
POLL_LIMIT = 40000

def gen(name, stamps=False, wflags="nt", s1flags="nt", prio=True, wo_prio=1, v_prio=1, d_prio=0,
        kburst=4, vburst=2, wburst=1, gu_first=False, slp=1, nocheck=False, klin=False, nost=False, nold=False,
        kf="nt", vf="nt", qdelay=0, off=""):
    cur = {"x": "?"}
    _A = Asm()
    class Wrap:
        def __getattr__(self, k): return getattr(_A, k)
        def __call__(self, text, tag=None):
            if "s[52:55]" in text and text.startswith("buffer_store") and text.endswith("sc1") and nost: return
            if "s[52:55]" in text and text.startswith("buffer_load") and text.endswith("sc1") and nold: return
            if "s[52:55]" in text and text.endswith("sc1"):
                key = cur["x"] + ("s" if text.startswith("buffer_store") else "l")
                if key in off.split(","): return
            _A(text, tag)
    A = Wrap()
    hdr = open("cdna_kernels/" + KN + ".s.ref").read().split("\n")
    for l in hdr:
        if l.startswith(";") and "@launch" not in l: A.raw(l)
        if not l.startswith(";"): break
    A.raw(f"; @launch grid=(256,1,1) block=(768,1,1) lds={LDS_BYTES}")
    A.raw('.amdgcn_target "amdgcn-amd-amdhsa--gfx950"')
    A.raw(".text")
    A.raw(f".globl {KN}_kernel")
    A.raw(".p2align 8")
    A.raw(f".type {KN}_kernel,@function")
    A.raw(f"{KN}_kernel:")

    X, K, V, WQ, WO, WG, WU, WD, GW, OUT, DBG, WS = 16, 18, 20, 22, 24, 28, 30, 32, 34, 36, 38, 40
    sB, sI, sH, sHALF, sBH, sR, sRHO, sT = "s4", "s5", "s6", "s7", "s8", "s9", "s10", "s11"
    st = {"n": 0, "slots": []}
    def stamp(slot):
        if not stamps: return
        k = 80 + 2 * st["n"]; st["n"] += 1; st["slots"].append((slot, k))
        assert k + 1 <= 101
        A(f"s_memrealtime s[{k}:{k+1}]")
    def stamp_reset():
        st["n"] = 0; st["slots"] = []
    def stamp_flush():
        if not stamps or not st["slots"]: return
        A("s_waitcnt lgkmcnt(0)")
        A(f"s_add_u32 s72, s{WS}, 0x10000000")
        A(f"s_addc_u32 s73, s{WS+1}, 0")
        A("s_mov_b32 s74, 0x100000")
        A("s_mov_b32 s75, 0x20000")
        A("s_lshl_b32 s76, s2, 8")
        A("s_mov_b64 exec, 1")
        for slot, k in st["slots"]:
            A(f"v_mov_b32 v4, s{k}")
            A(f"v_mov_b32 v5, s{k+1}")
            A(f"buffer_store_dwordx2 v[4:5], v2, s[72:75], s76 offen offset:{slot*8}")
        A("s_mov_b64 exec, -1")
        stamp_reset()

    def srd(d, base, off_lo=None, size=None, off_hi=None):
        if off_lo is None:
            A(f"s_mov_b32 s{d}, s{base}")
            A(f"s_mov_b32 s{d+1}, s{base+1}")
        else:
            A(f"s_add_u32 s{d}, s{base}, {off_lo}")
            A(f"s_addc_u32 s{d+1}, s{base+1}, {off_hi if off_hi is not None else 0}")
        A(f"s_mov_b32 s{d+2}, {size}")
        A(f"s_mov_b32 s{d+3}, 0x20000")

    def setexec(mask):
        A(f"s_mov_b32 exec_lo, {mask & 0xffffffff:#x}")
        A(f"s_mov_b32 exec_hi, {mask >> 32:#x}")

    def spin(flag, val, code, sleep=None, vt="v1"):
        if sleep is None: sleep = slp
        L = A.newlabel("L_spin"); D = A.newlabel("L_spind")
        A("s_mov_b32 s61, 0")
        A.label(L)
        A(f"ds_read_b32 {vt}, v2 offset:{flag}")
        A("s_waitcnt lgkmcnt(0)")
        A(f"v_readfirstlane_b32 s60, {vt}")
        A(f"s_cmp_ge_u32 s60, {val}")
        A(f"s_cbranch_scc1 {D}")
        if sleep: A(f"s_sleep {sleep}")
        A("s_add_u32 s61, s61, 1")
        A(f"s_cmp_lt_u32 s61, {SPIN_LIMIT}")
        A(f"s_cbranch_scc1 {L}")
        A(f"s_mov_b32 s62, {code}")
        A("s_branch L_fail")
        A.label(D)

    def bump(flag, vone="v1"):
        A(f"v_mov_b32 {vone}, 1")
        A("s_mov_b64 exec, 1")
        A(f"ds_add_u32 v2, {vone} offset:{flag}")
        A("s_mov_b64 exec, -1")

    def make_sel(base, t0, t1, t2):
        A(f"v_and_b32 {t0}, 1, v0")
        A(f"v_cmp_eq_u32 vcc, 1, {t0}")
        A(f"v_mov_b32 {t1}, 0x0c0c0100")
        A(f"v_mov_b32 {t2}, 0x01000c0c")
        A(f"v_cndmask_b32 {t1}, {t1}, {t2}, vcc")
        A(f"v_mov_b32 {t0}, 0x0c0c0302")
        A(f"v_mov_b32 {t2}, 0x03020c0c")
        A(f"v_cndmask_b32 {t2}, {t0}, {t2}, vcc")
        A(f"v_bfe_u32 {t0}, v0, 1, 2")
        for j in range(4):
            A(f"v_cmp_eq_u32 vcc, {j}, {t0}")
            A(f"v_mov_b32 v{base+j}, 0x0c0c0c0c")
            A(f"v_mov_b32 v{base+4+j}, 0x0c0c0c0c")
            A(f"v_cndmask_b32 v{base+j}, v{base+j}, {t1}, vcc")
            A(f"v_cndmask_b32 v{base+4+j}, v{base+4+j}, {t2}, vcc")

    def check_words(regs, t0, t1, retry_label, code, cnt="s61", sleep=0):
        if nocheck: return
        if len(regs) == 1:
            A(f"v_cmp_ne_u32 s[64:65], {sT}, {regs[0]}")
        else:
            A(f"v_min_u32 {t0}, {regs[0]}, {regs[1]}")
            A(f"v_max_u32 {t1}, {regs[0]}, {regs[1]}")
            for k in range(2, len(regs), 2):
                A(f"v_min3_u32 {t0}, {t0}, {regs[k]}, {regs[k+1]}")
                A(f"v_max3_u32 {t1}, {t1}, {regs[k]}, {regs[k+1]}")
            A(f"v_cmp_ne_u32 vcc, {sT}, {t0}")
            A(f"v_cmp_ne_u32 s[64:65], {sT}, {t1}")
            A("s_or_b64 s[64:65], s[64:65], vcc")
        D = A.newlabel("L_tagok")
        A("s_cmp_eq_u64 s[64:65], 0")
        A(f"s_cbranch_scc1 {D}")
        if sleep: A(f"s_sleep {sleep}")
        A(f"s_add_u32 {cnt}, {cnt}, 1")
        A(f"s_cmp_lt_u32 {cnt}, {POLL_LIMIT}")
        A(f"s_cbranch_scc1 {retry_label}")
        A(f"s_mov_b32 s62, {code}")
        A("s_branch L_fail")
        A.label(D)

    def tag_consts():
        for k in range(4): A(f"s_mov_b32 s{56+k}, {0x07060500 + k:#x}")
        A("s_mov_b32 s42, 0x0c0c0400")
        A("s_mov_b32 s43, 0x04000c0c")
    def embed(dst, src, k, vT):
        A(f"v_perm_b32 {dst}, {src}, {vT}, s{56+k}")
    def extract(groups, tmpbase):
        out = []
        if nocheck: return out
        for n, g in enumerate(groups):
            a, b = tmpbase + 2 * n, tmpbase + 2 * n + 1
            A(f"v_perm_b32 v{a}, v{g+1}, v{g}, s42")
            A(f"v_perm_b32 v{b}, v{g+3}, v{g+2}, s43")
        for n, g in enumerate(groups):
            a, b = tmpbase + 2 * n, tmpbase + 2 * n + 1
            A(f"v_or_b32 v{a}, v{a}, v{b}")
            out.append(f"v{a}")
        return out

    def rowreduce(op, v, t):
        for sh in (1, 2, 4, 8):
            A(f"{op}_dpp {v}, {v}, {v} row_ror:{sh} row_mask:0xf bank_mask:0xf")
        xreduce(op, [v], [t], 16); xreduce(op, [v], [t], 32)
    def xreduce(op, vs, ts, w):
        for v, t in zip(vs, ts): A(f"v_mov_b32 {t}, {v}")
        for v, t in zip(vs, ts): A(f"v_permlane{w}_swap_b32 {v}, {t}")
        for v, t in zip(vs, ts): A(f"{op} {v}, {v}, {t}")

    def load_tag():
        A(f"s_load_dword s12, s[{WS}:{WS+1}], 0")
    def make_tag():
        A("s_waitcnt lgkmcnt(0)")
        A("s_and_b32 s60, s12, 0x7f7f7f7f")
        A("s_add_u32 s60, s60, 0x01010101")
        A("s_and_b32 s61, s12, 0x80808080")
        A(f"s_xor_b32 {sT}, s60, s61")

    A("s_cmp_ge_u32 s2, 256")
    A("s_cbranch_scc1 L_exit")
    A("s_load_dwordx16 s[16:31], s[0:1], 0")
    A("s_load_dwordx8 s[32:39], s[0:1], 64")
    A("s_load_dwordx2 s[40:41], s[0:1], 96")
    if stamps: A("s_memrealtime s[78:79]")
    A("v_lshrrev_b32 v1, 6, v0")
    A("v_and_b32 v0, 63, v0")
    A("v_mov_b32 v2, 0")
    A("v_readfirstlane_b32 s3, v1")
    A(f"s_lshr_b32 {sB}, s2, 6")
    A(f"s_and_b32 {sI}, s2, 63")
    A(f"s_lshr_b32 {sH}, {sI}, 1")
    A(f"s_and_b32 {sHALF}, {sI}, 1")
    A(f"s_lshl_b32 {sBH}, {sB}, 5")
    A(f"s_add_u32 {sBH}, {sBH}, {sH}")
    A(f"s_lshl_b32 {sR}, {sB}, 1")
    A(f"s_add_u32 {sR}, {sR}, {sHALF}")
    A(f"s_lshr_b32 {sRHO}, {sBH}, 2")
    A(f"s_and_b32 s12, {sBH}, 3")
    A(f"s_lshl_b32 s12, s12, 3")
    A(f"s_add_u32 {sRHO}, {sRHO}, s12")
    A(f"s_and_b32 {sRHO}, {sRHO}, 31")
    A("s_cmp_lg_u32 s3, 11")
    A("s_cbranch_scc1 L_noinit")
    A("v_lshlrev_b32 v1, 2, v0")
    A("ds_write_b32 v1, v2")
    A("s_waitcnt lgkmcnt(0)")
    A.label("L_noinit")
    A("s_barrier")
    A("s_waitcnt lgkmcnt(0)")
    A("s_cmp_eq_u32 s3, 0")
    A("s_cbranch_scc1 L_Q")
    if gu_first:
        A("s_cmp_eq_u32 s3, 5")
        A("s_cbranch_scc1 L_GU")
    A("s_barrier")
    A("s_cmp_lt_u32 s3, 5")
    A("s_cbranch_scc1 L_K")
    if not gu_first:
        A("s_cmp_eq_u32 s3, 5")
        A("s_cbranch_scc1 L_GU")
    A("s_cmp_lt_u32 s3, 10")
    A("s_cbranch_scc1 L_V")
    A("s_branch L_D")
    KI_N = 4 if gu_first else 5

    SEL, XR, AR, DR, WR, PR = 8, 16, 36, 52, 60, 140
    def stage1(kind):
        A.vm_reset(); cur["x"] = kind[0]
        A("v_lshrrev_b32 v3, 4, v0")
        A("v_and_b32 v4, 15, v0")
        srd(44, X, size=5120)
        A("v_bfe_u32 v5, v0, 3, 1")
        A("v_mul_u32_u24 v5, 1280, v5")
        A("v_mul_u32_u24 v6, 40, v3")
        A(f"s_mul_i32 s60, {sR}, 160")
        A("v_add3_u32 v5, v5, v6, s60")
        if kind == "q":
            A(f"s_lshl_b32 s60, {sH}, 8")
            A("s_sub_u32 s61, 0x500000, s60")
            srd(48, WQ, "s60", "s61")
            A("v_mul_u32_u24 v6, 20, v3")
            A(f"s_mul_i32 s60, {sR}, 80")
            A("v_add_u32 v6, s60, v6")
            A("v_lshlrev_b32 v6, 13, v6")
            A("v_lshl_add_u32 v6, v4, 4, v6")
        else:
            A("v_mul_u32_u24 v6, 20, v3")
            A(f"s_mul_i32 s60, {sR}, 80")
            A("v_add_u32 v6, s60, v6")
            A("s_movk_i32 s60, 3456")
            A("v_mul_lo_u32 v6, v6, s60")
            A("v_and_b32 v7, 7, v0")
            A("v_lshl_add_u32 v6, v7, 4, v6")
            A(f"s_lshl_b32 s60, {sH}, 7")
            A("v_add_u32 v156, s60, v6")
            A("v_mov_b32 v157, 0")
            A("v_bfe_u32 v7, v0, 3, 1")
            A("v_cmp_eq_u32 vcc, 1, v7")
            A(f"v_mov_b32 v158, s{WG}")
            A(f"v_mov_b32 v159, s{WG+1}")
            A(f"v_mov_b32 v6, s{WU}")
            A(f"v_mov_b32 v7, s{WU+1}")
            A("v_cndmask_b32 v158, v158, v6, vcc")
            A("v_cndmask_b32 v159, v159, v7, vcc")
            A("v_lshl_add_u64 v[156:157], v[156:157], 0, v[158:159]")
            A("s_movk_i32 s66, 6912")
            A("s_mov_b32 s67, 0")
        if kind == "gu" and not gu_first: spin(F_KI, 4, 12)
        if kind == "gu": stamp(20)
        for t in range(20):
            w = WR + 4 * t
            if kind == "q":
                if t == 0:
                    A(f"buffer_load_dwordx4 v[{w}:{w+3}], v6, s[48:51], 0 offen {s1flags}", f"w{t}")
                else:
                    A(f"s_mov_b32 s60, {t*8192}")
                    A(f"buffer_load_dwordx4 v[{w}:{w+3}], v6, s[48:51], s60 offen {s1flags}", f"w{t}")
            else:
                A(f"global_load_dwordx4 v[{w}:{w+3}], v[156:157], off offset:{3456*(t&1)} {s1flags}", f"w{t}")
                if t & 1 and t != 19:
                    A("v_lshl_add_u64 v[156:157], v[156:157], 0, s[66:67]")
            if t == 3:
                for beta in range(2):
                    xb = XR + 10 * beta
                    A(f"buffer_load_dwordx4 v[{xb}:{xb+3}], v5, s[44:47], 0 offen offset:{2560*beta}", "x")
                    A(f"buffer_load_dwordx4 v[{xb+4}:{xb+7}], v5, s[44:47], 0 offen offset:{2560*beta+16}", "x")
                    A(f"buffer_load_dwordx2 v[{xb+8}:{xb+9}], v5, s[44:47], 0 offen offset:{2560*beta+32}", "x")
        if kind == "q" or gu_first: A("s_barrier")
        else: bump(F_KI, "v7")
        load_tag()
        make_sel(SEL, "v5", "v6", "v7")
        srd(52, WS, size=WS_SIZE)
        tag_consts()
        make_tag()
        A(f"v_mov_b32 v{PR+8}, {sT}")
        A("v_lshrrev_b32 v5, 5, v0")
        A("v_lshlrev_b32 v5, 12, v5")
        A("v_and_b32 v6, 31, v0")
        A("v_lshl_add_u32 v5, v6, 4, v5")
        off = QP_OFF if kind == "q" else GP_OFF
        A(f"s_lshl_b32 s60, {sH}, 14")
        A(f"s_lshl_b32 s61, {sR}, 9")
        A("s_add_u32 s60, s60, s61")
        A(f"s_add_u32 s68, s60, {off}")
        A(f"s_add_u32 s69, s68, 8192")
        A.wait_vm("x")
        for t in range(20):
            w = WR + 4 * t
            for beta in range(2):
                a = AR + 8 * (t & 1) + 4 * beta
                xd = XR + 10 * beta + (t >> 1)
                for j in range(4):
                    A(f"v_perm_b32 v{a+j}, v{xd}, v{xd}, v{SEL + 4*(t&1) + j}")
            if t > 3: A.wait_vm(f"w{t}")
            if t == 19 and kind == "q": stamp(13)
            for beta in range(2):
                a = AR + 8 * (t & 1) + 4 * beta
                d = DR + 4 * beta
                c = "0" if t == 0 else f"v[{d}:{d+3}]"
                A(f"v_mfma_f32_16x16x32_bf16 v[{d}:{d+3}], v[{a}:{a+3}], v[{w}:{w+3}], {c}")
        for beta in range(2):
            for r in range(4):
                embed(f"v{PR + 4*beta + r}", f"v{DR + 4*beta + r}", r, f"v{PR+8}")
            p = PR + 4 * beta
            so = "s68" if beta == 0 else "s69"
            A(f"buffer_store_dwordx4 v[{p}:{p+3}], v5, s[52:55], {so} offen sc1", "pub")

    A.label("L_Q")
    stamp_reset()
    if prio: A("s_setprio 3")
    stage1("q")
    stamp(2)
    A("v_lshlrev_b32 v5, 4, v0")
    A(f"s_lshl_b32 s60, {sH}, 14")
    A(f"s_lshl_b32 s61, {sB}, 12")
    A("s_add_u32 s60, s60, s61")
    A(f"s_add_u32 s68, s60, {QP_OFF}")
    if qdelay: A(f"s_sleep {qdelay}")
    A("s_mov_b32 s61, 0")
    A.label("L_qpoll")
    G = 60
    for m in range(4):
        A(f"buffer_load_dwordx4 v[{G+4*m}:{G+4*m+3}], v5, s[52:55], s68 offen offset:{m*1024} sc1")
    A.wait_vm_all()
    check_words(extract([G + 4 * m for m in range(4)], 100), "v6", "v7", "L_qpoll", 1)
    for r in range(4):
        A(f"v_add_f32 v{G+r}, v{G+r}, v{G+4+r}")
        A(f"v_add_f32 v{G+8+r}, v{G+8+r}, v{G+12+r}")
    for r in range(4):
        A(f"v_add_f32 v{G+r}, v{G+r}, v{G+8+r}")
    xreduce("v_add_f32", [f"v{G+r}" for r in range(4)], [f"v{G+4+r}" for r in range(4)], 32)
    A(f"v_cvt_pk_bf16_f32 v6, v{G}, v{G+1}")
    A(f"v_cvt_pk_bf16_f32 v7, v{G+2}, v{G+3}")
    A("v_and_b32 v8, 15, v0")
    A("v_lshlrev_b32 v8, 4, v8")
    A("v_bfe_u32 v9, v0, 4, 1")
    A("v_lshl_add_u32 v8, v9, 3, v8")
    setexec(0xffffffff)
    A(f"ds_write_b64 v8, v[6:7] offset:{QB}")
    A("s_mov_b64 exec, -1")
    A(f"v_mov_b32 v6, {sT}")
    A(f"ds_write_b32 v2, v6 offset:{L_TW}")
    bump(F_Q)
    stamp(3)
    A(f"s_xor_b32 s60, {sHALF}, 1")
    A(f"s_lshl_b32 s61, {sBH}, 1")
    A("s_add_u32 s60, s60, s61")
    A("s_lshl_b32 s60, s60, 11")
    A(f"s_add_u32 s68, s60, {SP_OFF}")
    spin(F_S, 4, 2); cur["x"] = "s"
    stamp(23)
    A(f"ds_read_b128 v[60:63], v5 offset:{SB}")
    A("s_mov_b32 s61, 0")
    A.label("L_spoll")
    A("buffer_load_dwordx4 v[64:67], v5, s[52:55], s68 offen sc1")
    A("buffer_load_dwordx4 v[68:71], v5, s[52:55], s68 offen offset:1024 sc1")
    A.wait_vm_all()
    check_words(["v65", "v67", "v69", "v71"], "v6", "v7", "L_spoll", 3)
    stamp(5)
    A("s_waitcnt lgkmcnt(0)")
    src = ["v60", "v61", "v62", "v63", "v64", "v66", "v68", "v70"]
    E = 72
    for k, s in enumerate(src):
        A(f"v_lshlrev_b32 v{E+2*k}, 16, {s}")
        A(f"v_and_b32 v{E+2*k+1}, 0xffff0000, {s}")
    A(f"v_max_f32 v6, v{E}, v{E+1}")
    for k in range(2, 16, 2):
        A(f"v_max3_f32 v6, v6, v{E+k}, v{E+k+1}")
    rowreduce("v_max_f32", "v6", "v7")
    A("s_mov_b32 s60, 0x3fb8aa3b")
    for k in range(16):
        A(f"v_sub_f32 v{E+k}, v{E+k}, v6")
    for k in range(16):
        A(f"v_mul_f32 v{E+k}, s60, v{E+k}")
    for k in range(16):
        A(f"v_exp_f32 v{E+k}, v{E+k}")
    A(f"v_add_f32 v6, v{E}, v{E+1}")
    A(f"v_add_f32 v7, v{E+2}, v{E+3}")
    for k in range(4, 16, 2):
        A(f"v_add_f32 v6, v6, v{E+k}")
        A(f"v_add_f32 v7, v7, v{E+k+1}")
    A("v_add_f32 v6, v6, v7")
    rowreduce("v_add_f32", "v6", "v7")
    A("v_rcp_f32 v6, v6")
    for k in range(16):
        A(f"v_mul_f32 v{E+k}, v{E+k}, v6")
    for k in range(8):
        A(f"v_cvt_pk_bf16_f32 v{60+k}, v{E+2*k}, v{E+2*k+1}")
    A(f"s_lshl_b32 s60, {sHALF}, 10")
    A("v_add_u32 v6, s60, v5")
    A(f"ds_write_b128 v6, v[60:63] offset:{PB}")
    A("s_xor_b32 s60, s60, 1024")
    A("v_lshlrev_b32 v6, 3, v0")
    A("v_add_u32 v6, s60, v6")
    A(f"ds_write_b64 v6, v[64:65] offset:{PB}")
    A(f"ds_write_b64 v6, v[66:67] offset:{PB+512}")
    bump(F_P)
    stamp(6)
    A(f"s_cmp_ge_u32 {sI}, 20")
    A("s_cbranch_scc1 L_Qend")
    A(f"s_mul_i32 s60, {sB}, 20")
    A(f"s_add_u32 s60, s60, {sI}")
    A("s_lshl_b32 s60, s60, 13")
    A(f"s_add_u32 s68, s60, {FP_OFF}")
    A("s_add_u32 s69, s68, 4096")
    srd(44, OUT, size=5120)
    A("v_lshlrev_b32 v9, 3, v0")
    A(f"s_mul_i32 s70, {sB}, 1280")
    A(f"s_lshl_b32 s61, {sI}, 6")
    A("s_add_u32 s70, s70, s61")
    spin(F_PUB, 4, 4); cur["x"] = "f"
    stamp(22)
    A("s_mov_b32 s61, 0")
    A.label("L_fpoll")
    for m in range(8):
        so = "s68" if m < 4 else "s69"
        A(f"buffer_load_dwordx4 v[{G+4*m}:{G+4*m+3}], v5, s[52:55], {so} offen offset:{(m&3)*1024} sc1")
    A.wait_vm_all()
    check_words(extract([G + 4 * m for m in range(8)], 100), "v6", "v7", "L_fpoll", 5)
    for step in (4, 2, 1):
        for m in range(step):
            for r in range(4):
                A(f"v_add_f32 v{G+4*m+r}, v{G+4*m+r}, v{G+4*(m+step)+r}")
    vs = [f"v{G+r}" for r in range(4)]; ts = [f"v{G+4+r}" for r in range(4)]
    for v in vs:
        A(f"v_add_f32_dpp {v}, {v}, {v} row_ror:8 row_mask:0xf bank_mask:0xf")
    xreduce("v_add_f32", vs, ts, 16)
    xreduce("v_add_f32", vs, ts, 32)
    A(f"v_cvt_pk_bf16_f32 v6, v{G}, v{G+1}")
    A(f"v_cvt_pk_bf16_f32 v7, v{G+2}, v{G+3}")
    setexec(0xff)
    A("buffer_store_dwordx2 v[6:7], v9, s[44:47], s70 offen")
    A("s_mov_b64 exec, -1")
    A("s_cmp_lg_u32 s2, 0")
    A("s_cbranch_scc1 L_Qend")
    A(f"v_mov_b32 v6, {sT}")
    A("s_mov_b64 exec, 1")
    A("buffer_store_dword v6, v2, s[52:55], 0 offen")
    A("s_mov_b64 exec, -1")
    A.label("L_Qend")
    if stamps:
        stamp(1)
        st["slots"].append((0, 78))
        stamp_flush()
    A("s_endpgm")

    PW, PACC, PA = 32, 112, 16
    def proj_loads(srdreg, flags):
        A("v_lshrrev_b32 v3, 4, v0")
        A("v_mul_u32_u24 v3, 5120, v3")
        A("v_and_b32 v4, 15, v0")
        A("v_lshl_add_u32 v3, v4, 4, v3")
        A("s_movk_i32 s63, 3840")
        for u in range(4):
            for seg in range(5):
                w = PW + 4 * (5 * u + seg)
                if u < 3:
                    A(f"buffer_load_dwordx4 v[{w}:{w+3}], v3, s[{srdreg}:{srdreg+3}], 0 offen offset:{u*1280+seg*256} {flags}", f"p{u}_{seg}")
                else:
                    A(f"buffer_load_dwordx4 v[{w}:{w+3}], v3, s[{srdreg}:{srdreg+3}], s63 offen offset:{seg*256} {flags}", f"p{u}_{seg}")
                if (5 * u + seg + 1) % wburst == 0: A("s_nop 0")
    def proj_addr(slot_sgpr):
        A("v_and_b32 v4, 15, v0")
        A("v_lshlrev_b32 v4, 5, v4")
        A("v_lshrrev_b32 v6, 4, v0")
        A("v_lshl_add_u32 v4, v6, 4, v4")
        A(f"v_add_u32 v4, {slot_sgpr}, v4")
    def proj_mfma(o01, o23):
        for u in range(4):
            a = PA + 4 * (u & 1)
            srcd = o01 if u < 2 else o23
            for j in range(4):
                A(f"v_perm_b32 v{a+j}, {srcd}, {srcd}, v{8 + 4*(u&1) + j}")
            for seg in range(5):
                w = PW + 4 * (5 * u + seg)
                d = PACC + 4 * seg
                A.wait_vm(f"p{u}_{seg}")
                c = "0" if u == 0 else f"v[{d}:{d+3}]"
                A(f"v_mfma_f32_16x16x32_bf16 v[{d}:{d+3}], v[{a}:{a+3}], v[{w}:{w+3}], {c}")
        setexec(0xffffffff)
        for seg in range(5):
            d = PACC + 4 * seg
            A(f"ds_write_b128 v4, v[{d}:{d+3}] offset:{AP + seg*512}")
        A("s_mov_b64 exec, -1")

    A.label("L_K"); cur["x"] = "s"
    stamp_reset(); A.vm_reset()
    if prio: A("s_setprio 2")
    A("s_sub_u32 s13, s3, 1")
    A(f"s_lshl_b32 s60, {sBH}, 20")
    A(f"s_lshr_b32 s61, {sBH}, 12")
    A(f"s_lshl_b32 s62, {sHALF}, 17")
    A("s_add_u32 s62, s62, 0xC0000")
    A("s_add_u32 s60, s60, s62")
    A("s_addc_u32 s61, s61, 0")
    srd(44, K, "s60", 0x20000, "s61")
    A("v_and_b32 v3, 15, v0")
    A("v_lshlrev_b32 v3, 8, v3")
    A("v_lshrrev_b32 v4, 4, v0")
    A("v_lshl_add_u32 v3, v4, 4, v3")
    if klin: A("v_lshlrev_b32 v3, 4, v0")
    A("s_lshl_b32 s62, s13, 3")
    A(f"s_add_u32 s62, s62, {sRHO}")
    KR = 32
    stamp(24)
    for T in range(8):
        A(f"s_add_u32 s60, s62, {T}")
        A("s_and_b32 s60, s60, 31")
        A("s_lshl_b32 s60, s60, 12")
        for j in range(4):
            w = KR + 16 * T + 4 * j
            A(f"buffer_load_dwordx4 v[{w}:{w+3}], v3, s[44:47], s60 offen offset:{(1024 if klin else 64)*j} {kf}", f"k{T}_{j}")
            if (j + 1) % kburst == 0 and j != 3: A("s_nop 0")
    bump(F_KI)
    stamp(14)
    srd(52, WS, size=WS_SIZE)
    A("v_lshlrev_b32 v4, 4, v4")
    spin(F_Q, 1, 6)
    for j in range(4):
        A(f"ds_read_b128 v[{8+4*j}:{8+4*j+3}], v4 offset:{QB + 64*j}")
    A(f"ds_read_b32 v5, v2 offset:{L_TW}")
    A("s_waitcnt lgkmcnt(0)")
    Dt = [24, 28, 160, 164, 32, 36, 40, 44]
    for T in range(8):
        for j in range(4):
            w = KR + 16 * T + 4 * j
            d = Dt[T]
            A.wait_vm(f"k{T}_{j}")
            if T == 7 and j == 3: stamp(8)
            c = "0" if j == 0 else f"v[{d}:{d+3}]"
            A(f"v_mfma_f32_16x16x32_bf16 v[{d}:{d+3}], v[{8+4*j}:{8+4*j+3}], v[{w}:{w+3}], {c}")
    A("s_mov_b32 s64, 0xffff0000")
    A("s_mov_b32 s65, 0xffff0000")
    A("s_mov_b32 s66, 0")
    A("s_mov_b32 s67, -1")
    for grp, dst in ((0, "v6"), (1, "v7")):
        d = Dt[4 * grp: 4 * grp + 4]
        A(f"v_cndmask_b32 v{d[0]}, v{d[0]}, v{d[1]}, s[64:65]")
        A(f"v_cndmask_b32 v{d[2]}, v{d[2]}, v{d[3]}, s[64:65]")
        A(f"v_cndmask_b32 {dst}, v{d[0]}, v{d[2]}, s[66:67]")
    A("v_cvt_pk_bf16_f32 v6, v6, v7")
    A("v_and_b32 v7, 0xffff0000, v6")
    A("v_lshlrev_b32 v6, 16, v6")
    A("s_mov_b32 s60, 0x3db504f3")
    A("v_mul_f32 v6, s60, v6")
    A("v_mul_f32 v7, s60, v7")
    A("v_cvt_pk_bf16_f32 v4, v6, v7")
    A("v_and_b32 v6, 7, v0")
    A("v_lshlrev_b32 v6, 3, v6")
    A("v_lshrrev_b32 v7, 3, v0")
    A("v_add_u32 v6, v6, v7")
    A("s_lshl_b32 s60, s13, 6")
    A("v_add_u32 v6, s60, v6")
    A("v_lshlrev_b32 v7, 3, v6")
    A(f"s_lshl_b32 s60, {sBH}, 1")
    A(f"s_add_u32 s60, s60, {sHALF}")
    A("s_lshl_b32 s60, s60, 11")
    A(f"s_add_u32 s60, s60, {SP_OFF}")
    A("buffer_store_dwordx2 v[4:5], v7, s[52:55], s60 offen sc1", "sp")
    A("v_lshlrev_b32 v6, 2, v6")
    A(f"ds_write_b32 v6, v4 offset:{SB}")
    bump(F_S)
    stamp(4)
    A("v_mov_b32 v26, v5")
    if prio: A(f"s_setprio {wo_prio}")
    A(f"s_lshl_b32 s60, {sH}, 7")
    A(f"s_lshl_b32 s61, {sHALF}, 6")
    A("s_add_u32 s60, s60, s61")
    A("s_lshl_b32 s61, s13, 4")
    A("s_add_u32 s60, s60, s61")
    A("s_mul_i32 s60, s60, 1280")
    srd(48, WO, "s60", 20480)
    proj_loads(48, wflags)
    stamp(17)
    if prio: A("s_setprio 3")
    make_sel(8, "v5", "v6", "v7")
    tag_consts()
    A("s_mul_i32 s14, s13, 2560")
    proj_addr("s14")
    A("v_lshrrev_b32 v5, 4, v0")
    A("v_lshlrev_b32 v5, 4, v5")
    A("s_lshl_b32 s60, s13, 6")
    A("v_add_u32 v5, s60, v5")
    A("v_lshlrev_b32 v27, 4, v0")
    A("s_mul_i32 s60, s13, 640")
    A("v_add_u32 v27, s60, v27")
    A("v_lshrrev_b32 v28, 3, v0")
    A("s_mul_i32 s60, s13, 5")
    A("v_add_u32 v28, s60, v28")
    A("v_lshlrev_b32 v28, 13, v28")
    A("v_and_b32 v7, 7, v0")
    A("v_lshl_add_u32 v28, v7, 4, v28")
    A(f"s_mul_i32 s68, {sB}, {20*8192}")
    A(f"s_lshl_b32 s60, {sI}, 7")
    A("s_add_u32 s68, s68, s60")
    A(f"s_add_u32 s68, s68, {FP_OFF}")
    spin(F_O, 4, 7, sleep=0)
    stamp(16)
    for p in range(8):
        A(f"ds_read_b128 v[{132+4*p}:{132+4*p+3}], v5 offset:{OP + 256*p}")
    A("s_waitcnt lgkmcnt(0)")
    for step in (4, 2, 1):
        for p in range(step):
            for r in range(4):
                A(f"v_add_f32 v{132+4*p+r}, v{132+4*p+r}, v{132+4*(p+step)+r}")
    A("v_cvt_pk_bf16_f32 v24, v132, v133")
    A("v_cvt_pk_bf16_f32 v25, v134, v135")
    proj_mfma("v24", "v25")
    bump(F_A)
    stamp(10)
    spin(F_A, 6, 8, sleep=0); cur["x"] = "f"
    stamp(18)
    setexec(0xffffffffff)
    for s in range(6):
        A(f"ds_read_b128 v[{32+4*s}:{32+4*s+3}], v27 offset:{AP + 2560*s}")
    A(f"ds_read_b64 v[56:57], v2 offset:{L_G}")
    A("s_waitcnt lgkmcnt(0)")
    for r in range(4):
        A(f"v_add_f32 v{32+r}, v{32+r}, v{36+r}")
        A(f"v_add_f32 v{40+r}, v{40+r}, v{44+r}")
        A(f"v_add_f32 v{48+r}, v{48+r}, v{52+r}")
    for r in range(4):
        A(f"v_add_f32 v{32+r}, v{32+r}, v{40+r}")
        A(f"v_mul_f32 v{48+r}, v{48+r}, v57")
    for r in range(4):
        A(f"v_fma_f32 v{32+r}, v{32+r}, v56, v{48+r}")
    for r in range(4):
        embed(f"v{64+r}", f"v{32+r}", r, "v26")
    A("buffer_store_dwordx4 v[64:67], v28, s[52:55], s68 offen sc1")
    A("s_mov_b64 exec, -1")
    bump(F_PUB)
    stamp(11)
    if stamps:
        A("s_cmp_lg_u32 s3, 1")
        A("s_cbranch_scc1 L_exit")
        stamp_flush()
    A("s_endpgm")

    A.label("L_GU")
    stamp_reset()
    A(f"s_cmp_lt_u32 {sH}, 27")
    A("s_cbranch_scc1 L_GUwork")
    if gu_first: A("s_barrier")
    else: bump(F_KI)
    A("s_endpgm")
    A.label("L_GUwork")
    if prio: A("s_setprio 3")
    stage1("gu")
    stamp(21)
    A("v_lshrrev_b32 v5, 2, v0")
    A("v_lshlrev_b32 v5, 7, v5")
    A("v_and_b32 v6, 3, v0")
    A("v_lshl_add_u32 v5, v6, 4, v5")
    A(f"s_lshl_b32 s60, {sH}, 14")
    A(f"s_lshl_b32 s61, {sB}, 12")
    A("s_add_u32 s60, s60, s61")
    A(f"s_lshl_b32 s61, {sHALF}, 6")
    A("s_add_u32 s60, s60, s61")
    A(f"s_add_u32 s68, s60, {GP_OFF}")
    A("s_sleep 16")
    A("s_mov_b32 s61, 0")
    A.label("L_gpoll")
    A("buffer_load_dwordx4 v[60:63], v5, s[52:55], s68 offen sc1")
    A("buffer_load_dwordx4 v[64:67], v5, s[52:55], s68 offen offset:2048 sc1")
    A.wait_vm_all()
    check_words(extract([60, 64], 100), "v6", "v7", "L_gpoll", 9, sleep=16)
    vs = [f"v{60+r}" for r in range(4)]; ts = [f"v{64+r}" for r in range(4)]
    for r in range(4): A(f"v_add_f32 v{60+r}, v{60+r}, v{64+r}")
    xreduce("v_add_f32", vs, ts, 16)
    xreduce("v_add_f32", vs, ts, 32)
    A("v_cvt_pk_bf16_f32 v64, v60, v61")
    A("v_cvt_pk_bf16_f32 v65, v62, v63")
    A("v_lshlrev_b32 v60, 16, v64")
    A("v_and_b32 v61, 0xffff0000, v64")
    A("v_lshlrev_b32 v62, 16, v65")
    A("v_and_b32 v63, 0xffff0000, v65")
    for r in range(4):
        A(f"v_mov_b32_dpp v{64+r}, v{60+r} row_shl:4 row_mask:0xf bank_mask:0xf")
    kk = -2.0 * math.sqrt(2.0 / math.pi) * math.log2(math.e)
    A(f"s_mov_b32 s60, {f2u(0.044715):#x}")
    A(f"s_mov_b32 s61, {f2u(kk):#x}")
    for r in range(4):
        x, t = f"v{60+r}", f"v{68+r}"
        A(f"v_mul_f32 {t}, {x}, {x}")
        A(f"v_mul_f32 {t}, {t}, {x}")
        A(f"v_fma_f32 {t}, {t}, s60, {x}")
        A(f"v_mul_f32 {t}, s61, {t}")
        A(f"v_exp_f32 {t}, {t}")
        A(f"v_add_f32 {t}, 1.0, {t}")
        A(f"v_rcp_f32 {t}, {t}")
        A(f"v_mul_f32 {x}, {x}, {t}")
    A("v_cvt_pk_bf16_f32 v68, v60, v61")
    A("v_cvt_pk_bf16_f32 v69, v62, v63")
    A("v_lshlrev_b32 v60, 16, v68")
    A("v_and_b32 v61, 0xffff0000, v68")
    A("v_lshlrev_b32 v62, 16, v69")
    A("v_and_b32 v63, 0xffff0000, v69")
    for r in range(4): A(f"v_mul_f32 v{60+r}, v{60+r}, v{64+r}")
    A("v_cvt_pk_bf16_f32 v60, v60, v61")
    A("v_cvt_pk_bf16_f32 v61, v62, v63")
    A("v_and_b32 v6, 3, v0")
    A("v_lshlrev_b32 v6, 4, v6")
    A("v_bfe_u32 v7, v0, 3, 1")
    A("v_lshl_add_u32 v6, v7, 3, v6")
    setexec(0x0f0f)
    A(f"ds_write_b64 v6, v[60:61] offset:{HB}")
    A("s_mov_b64 exec, -1")
    bump(F_H)
    stamp(12)
    stamp_flush()
    A("s_endpgm")

    A.label("L_V")
    stamp_reset(); A.vm_reset()
    if prio: A(f"s_setprio {v_prio}")
    A("s_sub_u32 s13, s3, 6")
    A(f"s_lshl_b32 s60, {sBH}, 20")
    A(f"s_lshr_b32 s61, {sBH}, 12")
    A(f"s_lshl_b32 s62, {sHALF}, 7")
    A("s_add_u32 s62, s62, 0xC0000")
    A("s_add_u32 s60, s60, s62")
    A("s_addc_u32 s61, s61, 0")
    srd(44, V, "s60", 0x40000 - 128, "s61")
    A("v_lshrrev_b32 v3, 3, v0")
    A("v_lshlrev_b32 v4, 5, v3")
    A("v_lshlrev_b32 v3, 8, v3")
    A("v_and_b32 v5, 7, v0")
    A("v_lshl_add_u32 v3, v5, 4, v3")
    A("s_and_b32 s15, s13, 1")
    A("s_lshl_b32 s15, s15, 4")
    A(f"s_add_u32 s15, s15, {sRHO}")
    A("s_lshr_b32 s63, s13, 1")
    A("s_lshl_b32 s63, s63, 17")
    make_sel(8, "v5", "v6", "v7")
    VR = 32
    order = []
    spin(F_KI, KI_N, 13)
    stamp(19)
    for kk in range(2):
        for T in range(8):
            A(f"s_add_u32 s60, s15, {8*kk+T}")
            A("s_and_b32 s60, s60, 31")
            A("s_lshl_b32 s60, s60, 12")
            A("s_add_u32 s60, s60, s63")
            for u1 in range(2):
                n = len(order)
                w = VR + 4 * n
                par = T >> 2; u = 2 * (T & 3) + u1
                order.append((kk, par, u))
                A(f"buffer_load_dwordx4 v[{w}:{w+3}], v3, s[44:47], s60 offen offset:{2048*u1} {vf}", f"v{n}")
                if vburst == 1 and u1 == 0: A("s_nop 0")
    stamp(15)
    if prio: A("s_setprio 3")
    A("s_lshl_b32 s14, s13, 9")
    A("v_add_u32 v3, s14, v4")
    spin(F_P, 1, 10)
    for kk in range(2):
        for hh in range(2):
            p = 16 + 8 * kk + 4 * hh
            A(f"ds_read_b128 v[{p}:{p+3}], v3 offset:{PB + 256*kk + 16*hh}")
    A("s_waitcnt lgkmcnt(0)")
    A("v_and_b32 v3, 7, v0")
    A("v_lshlrev_b32 v3, 5, v3")
    A("v_bfe_u32 v1, v0, 4, 1")
    A("v_lshl_add_u32 v3, v1, 4, v3")
    A("v_lshrrev_b32 v1, 5, v0")
    A("v_lshl_add_u32 v3, v1, 8, v3")
    A("v_add_u32 v3, s14, v3")
    for n, (kk, par, u) in enumerate(order):
        w = VR + 4 * n
        a = 160 + 4 * (n & 1)
        pd = 16 + 8 * kk + u
        for j in range(4):
            A(f"v_perm_b32 v{a+j}, v{pd}, v{pd}, v{8 + 4*par + j}")
        A.wait_vm(f"v{n}")
        if n == 31: stamp(9)
        c = "0" if n == 0 else "v[4:7]"
        A(f"v_mfma_f32_16x16x32_bf16 v[4:7], v[{a}:{a+3}], v[{w}:{w+3}], {c}")
    A("v_mov_b32 v1, 1")
    A("s_mov_b32 exec_lo, 0x00ff00ff")
    A("s_mov_b32 exec_hi, 0xff00ff00")
    A(f"ds_write_b128 v3, v[4:7] offset:{OP}")
    A("s_mov_b64 exec, 1")
    A(f"ds_add_u32 v2, v1 offset:{F_O}")
    A("s_mov_b64 exec, -1")
    stamp(7)
    if stamps:
        A("s_cmp_lg_u32 s3, 6")
        A("s_cbranch_scc1 L_exit")
        stamp_flush()
    A("s_endpgm")

    A.label("L_D")
    stamp_reset(); A.vm_reset()
    if prio and d_prio: A(f"s_setprio {d_prio}")
    A("s_sub_u32 s13, s3, 10")
    A("s_cmp_lg_u32 s13, 0")
    A("s_cbranch_scc1 L_nogate")
    A(f"s_mul_i32 s60, {sB}, 1280")
    srd(44, X, "s60", 1280)
    srd(48, GW, size=1280)
    A("v_lshlrev_b32 v3, 5, v0")
    A("buffer_load_dwordx4 v[8:11], v3, s[44:47], 0 offen")
    A("buffer_load_dwordx4 v[12:15], v3, s[44:47], 0 offen offset:16")
    A("buffer_load_dwordx4 v[16:19], v3, s[48:51], 0 offen")
    A("buffer_load_dwordx4 v[20:23], v3, s[48:51], 0 offen offset:16")
    A.wait_vm_all()
    A("v_mov_b32 v4, 0")
    for k in range(8):
        A(f"v_lshlrev_b32 v24, 16, v{8+k}")
        A(f"v_and_b32 v25, 0xffff0000, v{8+k}")
        A(f"v_lshlrev_b32 v26, 16, v{16+k}")
        A(f"v_and_b32 v27, 0xffff0000, v{16+k}")
        A("v_mul_f32 v24, v24, v26")
        A("v_mul_f32 v25, v25, v27")
        A("v_cvt_pk_bf16_f32 v24, v24, v25")
        A("v_and_b32 v25, 0xffff0000, v24")
        A("v_lshlrev_b32 v24, 16, v24")
        A("v_add_f32 v4, v4, v24")
        A("v_add_f32 v4, v4, v25")
    rowreduce("v_add_f32", "v4", "v5")
    A("v_cvt_pk_bf16_f32 v4, v4, v4")
    A("v_lshlrev_b32 v4, 16, v4")
    A("v_mul_f32 v4, 0xbfb8aa3b, v4")
    A("v_exp_f32 v4, v4")
    A("v_add_f32 v4, 1.0, v4")
    A("v_rcp_f32 v4, v4")
    A("v_cvt_pk_bf16_f32 v4, v4, v4")
    A("v_lshlrev_b32 v4, 16, v4")
    A("v_sub_f32 v5, 1.0, v4")
    A("v_cvt_pk_bf16_f32 v5, v5, v5")
    A("v_lshlrev_b32 v5, 16, v5")
    A("s_mov_b64 exec, 1")
    A(f"ds_write_b64 v2, v[4:5] offset:{L_G}")
    A("s_mov_b64 exec, -1")
    A.label("L_nogate")
    A.vm_reset()
    A("s_add_u32 s14, s13, 4")
    A("s_mul_i32 s14, s14, 2560")
    A(f"s_cmp_lt_u32 {sH}, 27")
    A("s_cbranch_scc1 L_Dwork")
    for k in range(4): A(f"v_mov_b32 v{8+k}, 0")
    A("v_lshlrev_b32 v4, 4, v0")
    A("v_add_u32 v4, s14, v4")
    A(f"ds_write_b128 v4, v[8:11] offset:{AP}")
    A(f"ds_write_b128 v4, v[8:11] offset:{AP+1024}")
    setexec(0xffffffff)
    A(f"ds_write_b128 v4, v[8:11] offset:{AP+2048}")
    A("s_mov_b64 exec, -1")
    bump(F_A)
    A("s_endpgm")
    A.label("L_Dwork")
    A(f"s_lshl_b32 s60, {sI}, 5")
    A("s_lshl_b32 s61, s13, 4")
    A("s_add_u32 s60, s60, s61")
    A("s_mul_i32 s60, s60, 1280")
    srd(48, WD, "s60", 20480)
    make_sel(8, "v5", "v6", "v7")
    spin(F_KI, KI_N, 14)
    proj_loads(48, wflags)
    proj_addr("s14")
    A("v_lshrrev_b32 v5, 4, v0")
    A("v_lshlrev_b32 v5, 3, v5")
    A("s_lshl_b32 s60, s13, 5")
    A("v_add_u32 v5, s60, v5")
    spin(F_H, 1, 11)
    A(f"ds_read_b64 v[24:25], v5 offset:{HB}")
    A("s_waitcnt lgkmcnt(0)")
    proj_mfma("v24", "v25")
    bump(F_A)
    A("s_endpgm")

    A.label("L_fail")
    srd(44, DBG, size=256)
    A("s_lshl_b32 s60, s62, 2")
    A("v_mov_b32 v1, 1")
    A("s_mov_b64 exec, 1")
    A("buffer_atomic_add v1, v2, s[44:47], s60 offen")
    A.label("L_exit")
    A("s_endpgm")

    nv = (A.maxv + 7) // 8 * 8
    assert nv <= 168, nv
    A.raw('.section .rodata,"a"')
    A.raw(".p2align 6")
    A.raw(f".amdhsa_kernel {KN}_kernel")
    A.raw(f"  .amdhsa_next_free_vgpr {nv}")
    A.raw(f"  .amdhsa_next_free_sgpr {102}")
    A.raw(f"  .amdhsa_accum_offset {nv}")
    A.raw("  .amdhsa_group_segment_fixed_size 0")
    A.raw("  .amdhsa_kernarg_size 104")
    A.raw("  .amdhsa_user_sgpr_count 2")
    A.raw("  .amdhsa_user_sgpr_kernarg_segment_ptr 1")
    A.raw("  .amdhsa_system_sgpr_workgroup_id_x 1")
    A.raw(".end_amdhsa_kernel")
    open(name, "w").write(A.text())

if __name__ == "__main__":
    gen("t_a.s", gu_first=True, kf="")
    gen("t_b.s", gu_first=False, kf="")
    gen("t_c.s", gu_first=True, kf="", vf="", wflags="", s1flags="")
```

```python
import sys, math, struct
from asmdsl import Asm
KN = "gated_mix__sliding_block_cached__glu_gated_geglu__decode"
f2u = lambda f: struct.unpack("<I", struct.pack("<f", f))[0]

QP_OFF = 0x100000
GP_OFF = 0x180000
SP_OFF = 0x200000
FP_OFF = 0x280000
XP_OFF = 0x80000
WS_SIZE = 0x400000
F_Q, F_S, F_P, F_O, F_H, F_A, F_PUB, F_KI = 0, 4, 8, 12, 16, 20, 24, 28
L_TW, L_G, L_OMG = 32, 40, 44
F_X = 48
L_F = 52
QB, HB, SB, PB, OP, AP = 0x100, 0x200, 0x400, 0x800, 0x1000, 0x1800
KB = 0x6000
LDS_BYTES = KB + 0x20000
SPIN_LIMIT = 400000
POLL_LIMIT = 40000

def gen(name, stamps=False, wflags="nt", s1flags="nt", prio=True, wo_prio=1, v_prio=1, d_prio=0,
        kburst=4, vburst=2, wburst=1, gu_first=False, slp=1, nocheck=False, klin=False, nost=False, nold=False,
        kf="nt", vf="nt", qdelay=0, off="", kdma=True, spub_q=True, rnd=True, merged=True, skip="", hmap=True, plain="", xcc=True, forcemode=0, rhomode=0, hmap2=False, rnd_tiles=0, vdesync=False, v64=False, wo_last=0, fpipe=0, diag=None, onebar=True, nsplit=(20, 20), dynf=False, nib=True):
    assert gu_first and xcc
    skip = skip.split(",")
    cur = {"x": "?"}
    _A = Asm()
    class Wrap:
        def __getattr__(self, k): return getattr(_A, k)
        def __call__(self, text, tag=None):
            if "s[52:55]" in text and text.startswith("buffer_store") and text.endswith("sc1") and nost: return
            if "s[52:55]" in text and text.startswith("buffer_load") and text.endswith("sc1") and nold: return
            if "s[52:55]" in text and text.endswith("sc1"):
                key = cur["x"] + ("s" if text.startswith("buffer_store") else "l")
                if key in off.split(","): return
                if key in plain.split(","): text = text[:-4]
            _A(text, tag)
    A = Wrap()
    hdr = open("cdna_kernels/" + KN + ".s.ref").read().split("\n")
    for l in hdr:
        if l.startswith(";") and "@launch" not in l: A.raw(l)
        if not l.startswith(";"): break
    A.raw(f"; @launch grid=(256,1,1) block=(768,1,1) lds={LDS_BYTES if kdma else KB}")
    A.raw('.amdgcn_target "amdgcn-amd-amdhsa--gfx950"')
    A.raw(".text")
    A.raw(f".globl {KN}_kernel")
    A.raw(".p2align 8")
    A.raw(f".type {KN}_kernel,@function")
    A.raw(f"{KN}_kernel:")

    X, K, V, WQ, WO, WG, WU, WD, GW, OUT, DBG, WS = 16, 18, 20, 22, 24, 28, 30, 32, 34, 36, 38, 40
    sB, sI, sH, sHALF, sBH, sR, sRHO, sT = "s4", "s5", "s6", "s7", "s8", "s9", "s10", "s11"
    st = {"n": 0, "slots": []}
    def stamp(slot):
        if diag and diag == slot and st.get("role") == "q": A("s_memrealtime s[96:97]")
        if not stamps: return
        k = 80 + 2 * st["n"]; st["n"] += 1; st["slots"].append((slot, k))
        assert k + 1 <= 97
        A(f"s_memrealtime s[{k}:{k+1}]")
    def stamp_reset():
        st["n"] = 0; st["slots"] = []
    def stamp_flush():
        if not stamps or not st["slots"]: return
        A("s_waitcnt lgkmcnt(0)")
        A(f"s_add_u32 s72, s{WS}, 0x10000000")
        A(f"s_addc_u32 s73, s{WS+1}, 0")
        A("s_mov_b32 s74, 0x100000")
        A("s_mov_b32 s75, 0x20000")
        A("s_lshl_b32 s76, s2, 8")
        A("s_mov_b64 exec, 1")
        for slot, k in st["slots"]:
            A(f"v_mov_b32 v4, s{k}")
            A(f"v_mov_b32 v5, s{k+1}")
            A(f"buffer_store_dwordx2 v[4:5], v2, s[72:75], s76 offen offset:{slot*8}")
        A("s_mov_b64 exec, -1")
        stamp_reset()

    def srd(d, base, off_lo=None, size=None, off_hi=None):
        if {WQ: "q", K: "k", V: "v", WO: "w", WD: "w"}.get(base) in skip: size = 0
        if off_lo is None:
            A(f"s_mov_b32 s{d}, s{base}")
            A(f"s_mov_b32 s{d+1}, s{base+1}")
        else:
            A(f"s_add_u32 s{d}, s{base}, {off_lo}")
            A(f"s_addc_u32 s{d+1}, s{base+1}, {off_hi if off_hi is not None else 0}")
        A(f"s_mov_b32 s{d+2}, {size}")
        A(f"s_mov_b32 s{d+3}, 0x20000")

    def setexec(mask):
        A(f"s_mov_b32 exec_lo, {mask & 0xffffffff:#x}")
        A(f"s_mov_b32 exec_hi, {mask >> 32:#x}")

    def spin(flag, val, code, sleep=None, vt="v1"):
        if sleep is None: sleep = slp
        L = A.newlabel("L_spin"); D = A.newlabel("L_spind")
        A("s_mov_b32 s61, 0")
        A.label(L)
        A(f"ds_read_b32 {vt}, v2 offset:{flag}")
        A("s_waitcnt lgkmcnt(0)")
        A(f"v_readfirstlane_b32 s60, {vt}")
        A(f"s_cmp_ge_u32 s60, {val}")
        A(f"s_cbranch_scc1 {D}")
        if sleep: A(f"s_sleep {sleep}")
        A("s_add_u32 s61, s61, 1")
        A(f"s_cmp_lt_u32 s61, {SPIN_LIMIT}")
        A(f"s_cbranch_scc1 {L}")
        A(f"s_mov_b32 s62, {code}")
        A("s_branch L_fail")
        A.label(D)

    def spin_read(flag, val, code, reads):
        L = A.newlabel("L_spin"); D = A.newlabel("L_spind")
        A("s_mov_b32 s61, 0")
        A.label(L)
        A(f"ds_read_b32 v1, v2 offset:{flag}")
        for r in reads: A(r)
        A("s_waitcnt lgkmcnt(0)")
        A(f"v_readfirstlane_b32 s60, v1")
        A(f"s_cmp_ge_u32 s60, {val}")
        A(f"s_cbranch_scc1 {D}")
        A("s_add_u32 s61, s61, 1")
        A(f"s_cmp_lt_u32 s61, {SPIN_LIMIT}")
        A(f"s_cbranch_scc1 {L}")
        A(f"s_mov_b32 s62, {code}")
        A("s_branch L_fail")
        A.label(D)

    def bump(flag, vone="v1"):
        A(f"v_mov_b32 {vone}, 1")
        A("s_mov_b64 exec, 1")
        A(f"ds_add_u32 v2, {vone} offset:{flag}")
        A("s_mov_b64 exec, -1")

    def make_sel(base, t0, t1, t2):
        A(f"v_and_b32 {t0}, 1, v0")
        A(f"v_cmp_eq_u32 vcc, 1, {t0}")
        A(f"v_mov_b32 {t1}, 0x0c0c0100")
        A(f"v_mov_b32 {t2}, 0x01000c0c")
        A(f"v_cndmask_b32 {t1}, {t1}, {t2}, vcc")
        A(f"v_mov_b32 {t0}, 0x0c0c0302")
        A(f"v_mov_b32 {t2}, 0x03020c0c")
        A(f"v_cndmask_b32 {t2}, {t0}, {t2}, vcc")
        A(f"v_bfe_u32 {t0}, v0, 1, 2")
        for j in range(4):
            A(f"v_cmp_eq_u32 vcc, {j}, {t0}")
            A(f"v_mov_b32 v{base+j}, 0x0c0c0c0c")
            A(f"v_mov_b32 v{base+4+j}, 0x0c0c0c0c")
            A(f"v_cndmask_b32 v{base+j}, v{base+j}, {t1}, vcc")
            A(f"v_cndmask_b32 v{base+4+j}, v{base+4+j}, {t2}, vcc")

    def check_words(regs, t0, t1, retry_label, code, cnt="s61", sleep=0):
        if nocheck: return
        if len(regs) == 1:
            A(f"v_cmp_ne_u32 s[64:65], {sT}, {regs[0]}")
        else:
            A(f"v_min_u32 {t0}, {regs[0]}, {regs[1]}")
            A(f"v_max_u32 {t1}, {regs[0]}, {regs[1]}")
            for k in range(2, len(regs), 2):
                A(f"v_min3_u32 {t0}, {t0}, {regs[k]}, {regs[k+1]}")
                A(f"v_max3_u32 {t1}, {t1}, {regs[k]}, {regs[k+1]}")
            A(f"v_cmp_ne_u32 vcc, {sT}, {t0}")
            A(f"v_cmp_ne_u32 s[64:65], {sT}, {t1}")
            A("s_or_b64 s[64:65], s[64:65], vcc")
        D = A.newlabel("L_tagok")
        A("s_cmp_eq_u64 s[64:65], 0")
        A(f"s_cbranch_scc1 {D}")
        if sleep: A(f"s_sleep {sleep}")
        A(f"s_add_u32 {cnt}, {cnt}, 1")
        A(f"s_cmp_lt_u32 {cnt}, {POLL_LIMIT}")
        A(f"s_cbranch_scc1 {retry_label}")
        A(f"s_mov_b32 s62, {code}")
        A("s_branch L_fail")
        A.label(D)

    def tag_consts():
        for k in range(4): A(f"s_mov_b32 s{56+k}, {0x07060500 + k:#x}")
        A("s_mov_b32 s42, 0x0c0c0400")
        A("s_mov_b32 s43, 0x04000c0c")
    def embed(dst, src, k, vT):
        if rnd:
            A(f"v_add_u32 {dst}, 0x80, {src}")
            src = dst
        A(f"v_perm_b32 {dst}, {src}, {vT}, s{56+k}")
    def embed4(dst, src, k):
        A(f"v_add_u32 {dst}, 8, {src}")
        if k == 0: A(f"v_bfi_b32 {dst}, 15, {sT}, {dst}")
        else:
            A(f"s_lshr_b32 s60, {sT}, {8*k}")
            A(f"v_bfi_b32 {dst}, 15, s60, {dst}")
    def check4(groups, tmpbase, retry, code, sleep=0):
        words = extract(groups, tmpbase)
        if not nocheck:
            A("s_mov_b32 s60, 0x0f0f0f0f")
            A(f"v_mov_b32 v6, {sT}")
            for wd in words: A(f"v_bfi_b32 {wd}, s60, {wd}, v6")
        check_words(words, "v6", "v7", retry, code, sleep=sleep)
        for g in groups:
            for r in range(4): A(f"v_and_b32 v{g+r}, 0xfffffff0, v{g+r}")
    def unmask(groups):
        if not rnd: return
        for g in groups:
            for r in range(4): A(f"v_and_b32 v{g+r}, 0xffffff00, v{g+r}")
    def extract(groups, tmpbase):
        out = []
        if nocheck: return out
        for n, g in enumerate(groups):
            a, b = tmpbase + 2 * n, tmpbase + 2 * n + 1
            A(f"v_perm_b32 v{a}, v{g+1}, v{g}, s42")
            A(f"v_perm_b32 v{b}, v{g+3}, v{g+2}, s43")
        for n, g in enumerate(groups):
            a, b = tmpbase + 2 * n, tmpbase + 2 * n + 1
            A(f"v_or_b32 v{a}, v{a}, v{b}")
            out.append(f"v{a}")
        return out

    def wait_mode():
        if not xcc: return
        spin(F_X, 1, 15)
        A("s_mov_b32 s77, s60")
    def get_f():
        spin(F_X, 1, 17)
        A(f"ds_read_b32 v1, v2 offset:{L_F}")
        A("s_waitcnt lgkmcnt(0)")
        A(f"v_readfirstlane_b32 {sF}, v1")
        A(f"s_lshl_b32 {sFI}, {sF}, 1")
        A(f"s_add_u32 {sFI}, {sFI}, {sHALF}")
    def pub_stores(stores):
        if not xcc:
            for t in stores: A(t + " sc1")
            return
        Lr = A.newlabel("L_pubr"); Ld = A.newlabel("L_pubd")
        A("s_cmp_lg_u32 s77, 1")
        A(f"s_cbranch_scc1 {Lr}")
        for t in stores: _A(t)
        A(f"s_branch {Ld}")
        A.label(Lr)
        for t in stores: A(t + " sc1")
        A.label(Ld)

    def tile_init(skw, slo, shi, sa, add=0):
        A(f"s_add_u32 s60, {skw}, {add}")
        A(f"s_lshl_b32 {slo}, s60, 1")
        A(f"s_add_u32 {slo}, {slo}, {sRHO}")
        A(f"s_lshr_b32 {shi}, {sRHO}, 3")
        A(f"s_add_u32 {shi}, {shi}, s60")
        A(f"s_and_b32 {shi}, {shi}, 3")
        A(f"s_lshl_b32 {shi}, {shi}, 15")
        A(f"s_lshr_b32 {sa}, {sRHO}, 4")
        A(f"s_and_b32 {sa}, {sa}, 6")
        A(f"s_or_b32 {sa}, {sa}, 1")
    def tile_next(slo, shi, sa):
        A(f"s_and_b32 s60, {slo}, 7")
        A("s_lshl_b32 s60, s60, 12")
        A(f"s_add_u32 s60, s60, {shi}")
        A(f"s_add_u32 {slo}, {slo}, {sa}")

    def rowreduce(op, v, t):
        for sh in (1, 2, 4, 8):
            A(f"{op}_dpp {v}, {v}, {v} row_ror:{sh} row_mask:0xf bank_mask:0xf")
        xreduce(op, [v], [t], 16); xreduce(op, [v], [t], 32)
    def xreduce(op, vs, ts, w):
        for v, t in zip(vs, ts): A(f"v_mov_b32 {t}, {v}")
        for v, t in zip(vs, ts): A(f"v_permlane{w}_swap_b32 {v}, {t}")
        for v, t in zip(vs, ts): A(f"{op} {v}, {v}, {t}")

    def load_tag():
        A(f"s_load_dword s12, s[{WS}:{WS+1}], 0")
    def make_tag():
        A("s_waitcnt lgkmcnt(0)")
        A("s_and_b32 s60, s12, 0x7f7f7f7f")
        A("s_add_u32 s60, s60, 0x01010101")
        A("s_and_b32 s61, s12, 0x80808080")
        A(f"s_xor_b32 {sT}, s60, s61")

    A("s_cmp_ge_u32 s2, 256")
    A("s_cbranch_scc1 L_exit")
    A("s_load_dwordx16 s[16:31], s[0:1], 0")
    A("s_load_dwordx8 s[32:39], s[0:1], 64")
    A("s_load_dwordx2 s[40:41], s[0:1], 96")
    if stamps or diag: A("s_memrealtime s[78:79]")
    A("v_lshrrev_b32 v1, 6, v0")
    A("v_and_b32 v0, 63, v0")
    A("v_mov_b32 v2, 0")
    A("v_readfirstlane_b32 s3, v1")
    sF, sFI = "s100", "s101"
    if hmap:
        A(f"s_and_b32 {sF}, s2, 31")
        if hmap2:
            A(f"s_and_b32 {sH}, s2, 7")
            A(f"s_lshl_b32 {sH}, {sH}, 2")
            A(f"s_lshr_b32 s12, {sF}, 3")
            A(f"s_add_u32 {sH}, {sH}, s12")
        else:
            A(f"s_mov_b32 {sH}, {sF}")
        A(f"s_lshr_b32 {sR}, s2, 5")
        A(f"s_lshr_b32 {sB}, s2, 6")
        A(f"s_and_b32 {sHALF}, {sR}, 1")
        A(f"s_lshl_b32 {sI}, {sH}, 1")
        A(f"s_add_u32 {sI}, {sI}, {sHALF}")
        A(f"s_lshl_b32 {sBH}, {sB}, 5")
        A(f"s_add_u32 {sBH}, {sBH}, {sH}")
        A(f"s_lshl_b32 {sFI}, {sF}, 1")
        A(f"s_add_u32 {sFI}, {sFI}, {sHALF}")
        A(f"s_mov_b32 s99, {sFI}")
        A(f"s_lshr_b32 {sRHO}, {sF}, 3")
        A(f"s_lshl_b32 s12, {sB}, 2")
        A(f"s_add_u32 {sRHO}, {sRHO}, s12")
        if rhomode == 0:
            A(f"s_and_b32 s12, {sF}, 1")
            A(f"s_lshl_b32 s12, s12, 4")
            A(f"s_add_u32 {sRHO}, {sRHO}, s12")
        elif rhomode == 1:
            pass
        elif rhomode == 2:
            A(f"s_lshr_b32 s12, {sRHO}, 3")
            A(f"s_lshl_b32 {sRHO}, {sRHO}, 1")
            A(f"s_add_u32 {sRHO}, {sRHO}, s12")
        elif rhomode == 3:
            A(f"s_and_b32 s12, {sF}, 7")
            A(f"s_lshl_b32 s12, s12, 2")
            A(f"s_add_u32 {sRHO}, {sRHO}, s12")
        elif rhomode == 4:
            A(f"s_and_b32 s12, {sF}, 7")
            A(f"s_add_u32 {sRHO}, {sRHO}, s12")
        elif rhomode == 5:
            A(f"s_and_b32 s12, {sF}, 7")
            A(f"s_mul_i32 s12, s12, 3")
            A(f"s_mul_i32 {sRHO}, {sRHO}, 5")
            A(f"s_add_u32 {sRHO}, {sRHO}, s12")
    else:
        A(f"s_lshr_b32 {sB}, s2, 6")
        A(f"s_and_b32 {sI}, s2, 63")
        A(f"s_lshr_b32 {sH}, {sI}, 1")
        A(f"s_and_b32 {sHALF}, {sI}, 1")
        A(f"s_lshl_b32 {sBH}, {sB}, 5")
        A(f"s_add_u32 {sBH}, {sBH}, {sH}")
        A(f"s_lshl_b32 {sR}, {sB}, 1")
        A(f"s_add_u32 {sR}, {sR}, {sHALF}")
        A(f"s_lshr_b32 {sRHO}, {sBH}, 2")
        A(f"s_and_b32 s12, {sBH}, 3")
        A(f"s_lshl_b32 s12, s12, 3")
        A(f"s_add_u32 {sRHO}, {sRHO}, s12")
        A(f"s_and_b32 {sRHO}, {sRHO}, 31")
    if rnd_tiles:
        A(f"s_mul_i32 {sRHO}, {sBH}, {rnd_tiles:#x}")
        A(f"s_lshr_b32 {sRHO}, {sRHO}, 20")
    if onebar:
        A("s_cmp_eq_u32 s3, 0")
        A("s_cbranch_scc1 L_Q")
        A("s_cmp_eq_u32 s3, 5")
        A("s_cbranch_scc1 L_GU")
        A("s_cmp_eq_u32 s3, 11")
        A("s_cbranch_scc1 L_ids")
        A("s_waitcnt lgkmcnt(0)")
        A("s_cmp_lt_u32 s3, 5")
        A("s_cbranch_scc1 L_K")
        A("s_barrier")
        A("s_cmp_lt_u32 s3, 10")
        A("s_cbranch_scc1 L_V")
        A("s_branch L_D")
    else:
        A("s_cmp_lg_u32 s3, 11")
        A("s_cbranch_scc1 L_noinit")
        A("v_lshlrev_b32 v1, 2, v0")
        A("ds_write_b32 v1, v2")
        A("s_waitcnt lgkmcnt(0)")
        load_tag()
        A("s_barrier")
        A("s_barrier")
        A("s_branch L_D")
        A.label("L_noinit")
        A("s_barrier")
        A("s_waitcnt lgkmcnt(0)")
        A("s_cmp_eq_u32 s3, 0")
        A("s_cbranch_scc1 L_Q")
        A("s_cmp_eq_u32 s3, 5")
        A("s_cbranch_scc1 L_GU")
        A("s_barrier")
        A("s_cmp_lt_u32 s3, 5")
        A("s_cbranch_scc1 L_K")
        A("s_cmp_lt_u32 s3, 10")
        A("s_cbranch_scc1 L_V")
        A("s_branch L_D")
    KI_N = 4 if gu_first else 5

    nA, nB = nsplit
    NT = nA; SKIP = nA - nB
    assert nA + nB == 40 and SKIP % 2 == 0 and nA % 4 == 0 or nA == 20
    XD = NT // 2
    SEL, XR, AR, DR, WR = 8, 16, 40, 56, 64
    PR = 64
    def stage1(kind):
        A.vm_reset(); cur["x"] = kind[0]
        A("v_lshrrev_b32 v3, 4, v0")
        A("v_and_b32 v4, 15, v0")
        A(f"s_mul_i32 s62, {sB}, 160")
        A(f"s_cmp_eq_u32 {sHALF}, 0")
        A(f"s_cselect_b32 s63, {nA}, {nB}")
        A(f"s_cselect_b32 s61, 0, {4*nA - SKIP}")
        A("s_add_u32 s62, s62, s61")
        A("v_mul_u32_u24 v6, s63, v3")
        A("v_add_u32 v6, s62, v6")
        A("v_bfe_u32 v5, v0, 3, 1")
        A("v_mul_u32_u24 v5, 1280, v5")
        A("v_lshl_add_u32 v5, v6, 1, v5")
        for k in range(8): A(f"v_mov_b32 v{DR+k}, 0")
        if kind == "q":
            A("v_lshlrev_b32 v6, 13, v6")
            A("v_lshl_add_u32 v6, v4, 4, v6")
            A(f"s_lshl_b32 s60, {sH}, 8")
            A("s_sub_u32 s61, 0x500000, s60")
            if onebar: A("s_waitcnt lgkmcnt(0)")
            srd(48, WQ, "s60", "s61")
        else:
            if SKIP:
                A(f"s_mul_i32 s61, {sHALF}, {SKIP}")
                A("v_add_u32 v6, s61, v6")
            A("s_movk_i32 s60, 3456")
            A("v_mul_lo_u32 v6, v6, s60")
            A("v_and_b32 v7, 7, v0")
            A("v_lshl_add_u32 v6, v7, 4, v6")
            A(f"s_lshl_b32 s60, {sF}, 7")
            A("v_add_u32 v160, s60, v6")
            A("v_mov_b32 v161, 0")
            A("v_bfe_u32 v7, v0, 3, 1")
            A("v_cmp_eq_u32 vcc, 1, v7")
            A("s_movk_i32 s66, 6912")
            A("s_mov_b32 s67, 0")
            if onebar: A("s_waitcnt lgkmcnt(0)")
            A(f"v_mov_b32 v162, s{WG}")
            A(f"v_mov_b32 v163, s{WG+1}")
            A(f"v_mov_b32 v6, s{WU}")
            A(f"v_mov_b32 v7, s{WU+1}")
            A("v_cndmask_b32 v162, v162, v6, vcc")
            A("v_cndmask_b32 v163, v163, v7, vcc")
            A("v_lshl_add_u64 v[160:161], v[160:161], 0, v[162:163]")
        srd(44, X, size=5120)
        if kind == "gu": stamp(20)
        Ls = A.newlabel("L_s1skip")
        if SKIP:
            A(f"s_cmp_lg_u32 {sHALF}, 0")
            A(f"s_cbranch_scc1 {Ls}")
        for t in range(NT):
            w = WR + 4 * t
            if SKIP and t == SKIP: A.label(Ls)
            if kind == "q":
                if t == 0:
                    A(f"buffer_load_dwordx4 v[{w}:{w+3}], v6, s[48:51], 0 offen {s1flags}", f"w{t}")
                else:
                    A(f"s_mov_b32 s60, {t*8192}")
                    A(f"buffer_load_dwordx4 v[{w}:{w+3}], v6, s[48:51], s60 offen {s1flags}", f"w{t}")
            else:
                A(f"global_load_dwordx4 v[{w}:{w+3}], v[160:161], off offset:{3456*(t&1)} {s1flags}", f"w{t}")
                if t & 1 and t != NT - 1:
                    A("v_lshl_add_u64 v[160:161], v[160:161], 0, s[66:67]")
            if t == SKIP + 3:
                for beta in range(2):
                    xb = XR + 12 * beta
                    A(f"buffer_load_dwordx4 v[{xb}:{xb+3}], v5, s[44:47], 0 offen offset:{2560*beta}", "x")
                    A(f"buffer_load_dwordx4 v[{xb+4}:{xb+7}], v5, s[44:47], 0 offen offset:{2560*beta+16}", "x")
                    if XD > 10: A(f"buffer_load_dwordx4 v[{xb+8}:{xb+11}], v5, s[44:47], 0 offen offset:{2560*beta+32}", "x")
                    else: A(f"buffer_load_dwordx2 v[{xb+8}:{xb+9}], v5, s[44:47], 0 offen offset:{2560*beta+32}", "x")
        if not (dynf and kind == "gu"): A("s_barrier")
        load_tag()
        make_sel(SEL, "v5", "v6", "v7")
        srd(52, WS, size=WS_SIZE)
        tag_consts()
        make_tag()
        A(f"v_mov_b32 v164, {sT}")
        A("v_lshrrev_b32 v5, 5, v0")
        A("v_lshlrev_b32 v5, 12, v5")
        A("v_and_b32 v6, 31, v0")
        A("v_lshl_add_u32 v5, v6, 4, v5")
        off = QP_OFF if kind == "q" else GP_OFF
        A(f"s_lshl_b32 s60, {sH}, 14")
        A(f"s_lshl_b32 s61, {sR}, 9")
        A("s_add_u32 s60, s60, s61")
        A(f"s_add_u32 s68, s60, {off}")
        A(f"s_add_u32 s69, s68, 8192")
        A.wait_vm("x")
        Lm = A.newlabel("L_s1mskip")
        if SKIP:
            A(f"s_cmp_lg_u32 {sHALF}, 0")
            A(f"s_cbranch_scc1 {Lm}")
        for t in range(NT):
            w = WR + 4 * t
            if SKIP and t == SKIP: A.label(Lm)
            for beta in range(2):
                a = AR + 8 * (t & 1) + 4 * beta
                xd = XR + 12 * beta + (t >> 1)
                for j in range(4):
                    A(f"v_perm_b32 v{a+j}, v{xd}, v{xd}, v{SEL + 4*(t&1) + j}")
            if t > SKIP + 3: A.wait_vm(f"w{t}")
            if t == NT - 1 and kind == "q": stamp(13)
            for beta in range(2):
                a = AR + 8 * (t & 1) + 4 * beta
                d = DR + 4 * beta
                A(f"v_mfma_f32_16x16x32_bf16 v[{d}:{d+3}], v[{a}:{a+3}], v[{w}:{w+3}], v[{d}:{d+3}]")
        for beta in range(2):
            for r in range(4):
                if nib: embed4(f"v{PR + 4*beta + r}", f"v{DR + 4*beta + r}", r)
                else: embed(f"v{PR + 4*beta + r}", f"v{DR + 4*beta + r}", r, "v164")
        wait_mode()
        pub_stores([f"buffer_store_dwordx4 v[{PR}:{PR+3}], v5, s[52:55], s68 offen",
                    f"buffer_store_dwordx4 v[{PR+4}:{PR+7}], v5, s[52:55], s69 offen"])

    A.label("L_Q")
    stamp_reset(); st["role"] = "q"
    if prio: A("s_setprio 3")
    stage1("q")
    stamp(2)
    A("v_lshlrev_b32 v5, 4, v0")
    A(f"s_lshl_b32 s60, {sH}, 14")
    A(f"s_lshl_b32 s61, {sB}, 12")
    A("s_add_u32 s60, s60, s61")
    A(f"s_add_u32 s68, s60, {QP_OFF}")
    if qdelay: A(f"s_sleep {qdelay}")
    A("s_mov_b32 s61, 0")
    A.label("L_qpoll")
    G = 60
    for m in range(4):
        A(f"buffer_load_dwordx4 v[{G+4*m}:{G+4*m+3}], v5, s[52:55], s68 offen offset:{m*1024} sc1")
    A.wait_vm_all()
    if nib: check4([G + 4 * m for m in range(4)], 100, "L_qpoll", 1)
    else:
        check_words(extract([G + 4 * m for m in range(4)], 100), "v6", "v7", "L_qpoll", 1)
        unmask([G + 4 * m for m in range(4)])
    for r in range(4):
        A(f"v_add_f32 v{G+r}, v{G+r}, v{G+4+r}")
        A(f"v_add_f32 v{G+8+r}, v{G+8+r}, v{G+12+r}")
    for r in range(4):
        A(f"v_add_f32 v{G+r}, v{G+r}, v{G+8+r}")
    xreduce("v_add_f32", [f"v{G+r}" for r in range(4)], [f"v{G+4+r}" for r in range(4)], 32)
    A(f"v_cvt_pk_bf16_f32 v6, v{G}, v{G+1}")
    A(f"v_cvt_pk_bf16_f32 v7, v{G+2}, v{G+3}")
    A("v_and_b32 v8, 15, v0")
    A("v_lshlrev_b32 v8, 4, v8")
    A("v_bfe_u32 v9, v0, 4, 1")
    A("v_lshl_add_u32 v8, v9, 3, v8")
    setexec(0xffffffff)
    A(f"ds_write_b64 v8, v[6:7] offset:{QB}")
    A("s_mov_b64 exec, -1")
    A(f"v_mov_b32 v6, {sT}")
    A(f"ds_write_b32 v2, v6 offset:{L_TW}")
    bump(F_Q)
    stamp(3)
    A(f"s_xor_b32 s60, {sHALF}, 1")
    A(f"s_lshl_b32 s61, {sBH}, 1")
    A("s_add_u32 s60, s60, s61")
    A("s_lshl_b32 s60, s60, 11")
    A(f"s_add_u32 s68, s60, {SP_OFF}")
    spin(F_S, 4, 2); cur["x"] = "s"
    stamp(23)
    A(f"ds_read_b128 v[60:63], v5 offset:{SB}")
    if spub_q:
        A("s_xor_b32 s69, s68, 2048")
        A(f"v_mov_b32 v65, {sT}")
        A(f"v_mov_b32 v67, {sT}")
        A(f"v_mov_b32 v69, {sT}")
        A(f"v_mov_b32 v71, {sT}")
        A("s_waitcnt lgkmcnt(0)")
        A("v_mov_b32 v64, v60")
        A("v_mov_b32 v66, v61")
        A("v_mov_b32 v68, v62")
        A("v_mov_b32 v70, v63")
        pub_stores(["buffer_store_dwordx4 v[64:67], v5, s[52:55], s69 offen",
                    "buffer_store_dwordx4 v[68:71], v5, s[52:55], s69 offen offset:1024"])
    A("s_mov_b32 s61, 0")
    A.label("L_spoll")
    A("buffer_load_dwordx4 v[64:67], v5, s[52:55], s68 offen sc1")
    A("buffer_load_dwordx4 v[68:71], v5, s[52:55], s68 offen offset:1024 sc1")
    A.wait_vm_all()
    check_words(["v65", "v67", "v69", "v71"], "v6", "v7", "L_spoll", 3)
    stamp(5)
    A("s_waitcnt lgkmcnt(0)")
    src = ["v60", "v61", "v62", "v63", "v64", "v66", "v68", "v70"]
    E = 72
    for k, s in enumerate(src):
        A(f"v_lshlrev_b32 v{E+2*k}, 16, {s}")
        A(f"v_and_b32 v{E+2*k+1}, 0xffff0000, {s}")
    A(f"v_max_f32 v6, v{E}, v{E+1}")
    for k in range(2, 16, 2):
        A(f"v_max3_f32 v6, v6, v{E+k}, v{E+k+1}")
    rowreduce("v_max_f32", "v6", "v7")
    A("s_mov_b32 s60, 0x3fb8aa3b")
    for k in range(16):
        A(f"v_sub_f32 v{E+k}, v{E+k}, v6")
    for k in range(16):
        A(f"v_mul_f32 v{E+k}, s60, v{E+k}")
    for k in range(16):
        A(f"v_exp_f32 v{E+k}, v{E+k}")
    A(f"v_add_f32 v6, v{E}, v{E+1}")
    A(f"v_add_f32 v7, v{E+2}, v{E+3}")
    for k in range(4, 16, 2):
        A(f"v_add_f32 v6, v6, v{E+k}")
        A(f"v_add_f32 v7, v7, v{E+k+1}")
    A("v_add_f32 v6, v6, v7")
    rowreduce("v_add_f32", "v6", "v7")
    A("v_rcp_f32 v6, v6")
    for k in range(16):
        A(f"v_mul_f32 v{E+k}, v{E+k}, v6")
    for k in range(8):
        A(f"v_cvt_pk_bf16_f32 v{60+k}, v{E+2*k}, v{E+2*k+1}")
    A(f"s_lshl_b32 s60, {sHALF}, 10")
    A("v_add_u32 v6, s60, v5")
    A(f"ds_write_b128 v6, v[60:63] offset:{PB}")
    A("s_xor_b32 s60, s60, 1024")
    if spub_q:
        A("v_add_u32 v6, s60, v5")
        A(f"ds_write_b128 v6, v[64:67] offset:{PB}")
    else:
        A("v_lshlrev_b32 v6, 3, v0")
        A("v_add_u32 v6, s60, v6")
        A(f"ds_write_b64 v6, v[64:65] offset:{PB}")
        A(f"ds_write_b64 v6, v[66:67] offset:{PB+512}")
    bump(F_P)
    stamp(6)
    A(f"s_cmp_ge_u32 s99, 20")
    A("s_cbranch_scc1 L_Qend")
    A(f"s_mul_i32 s60, {sB}, 20")
    A(f"s_add_u32 s60, s60, s99")
    A("s_lshl_b32 s60, s60, 13")
    A(f"s_add_u32 s68, s60, {FP_OFF}")
    A("s_add_u32 s69, s68, 4096")
    srd(44, OUT, size=5120)
    A("v_lshlrev_b32 v9, 3, v0")
    A(f"s_mul_i32 s70, {sB}, 1280")
    A(f"s_lshl_b32 s61, s99, 6")
    A("s_add_u32 s70, s70, s61")
    spin(F_PUB, 4, 4); cur["x"] = "f"
    stamp(22)
    A("s_mov_b32 s61, 0")
    def fissue(base):
        for m in range(8):
            so = "s68" if m < 4 else "s69"
            A(f"buffer_load_dwordx4 v[{base+4*m}:{base+4*m+3}], v5, s[52:55], {so} offen offset:{(m&3)*1024} sc1")
    if not fpipe:
        A.label("L_fpoll")
        fissue(G)
        A.wait_vm_all()
        check_words(extract([G + 4 * m for m in range(8)], 100), "v6", "v7", "L_fpoll", 5)
    else:
        sets = [G, 16, 120][:fpipe]
        for k in range(fpipe - 1):
            fissue(sets[k])
            A(f"s_sleep {6 if fpipe == 2 else 4}")
        A.label("L_fpoll")
        for k in range(fpipe):
            fissue(sets[(k + fpipe - 1) % fpipe])
            A(f"s_waitcnt vmcnt({8 * (fpipe - 1)})")
            words = extract([sets[k] + 4 * m for m in range(8)], 100)
            A(f"v_min_u32 v6, {words[0]}, {words[1]}")
            A(f"v_max_u32 v7, {words[0]}, {words[1]}")
            for q in range(2, 8, 2):
                A(f"v_min3_u32 v6, v6, {words[q]}, {words[q+1]}")
                A(f"v_max3_u32 v7, v7, {words[q]}, {words[q+1]}")
            A(f"v_cmp_ne_u32 vcc, {sT}, v6")
            A(f"v_cmp_ne_u32 s[64:65], {sT}, v7")
            A("s_or_b64 s[64:65], s[64:65], vcc")
            A("s_cmp_eq_u64 s[64:65], 0")
            A(f"s_cbranch_scc1 L_fok{k}")
        A("s_add_u32 s61, s61, 1")
        A(f"s_cmp_lt_u32 s61, {POLL_LIMIT}")
        A("s_cbranch_scc1 L_fpoll")
        A("s_mov_b32 s62, 5")
        A("s_branch L_fail")
        for k in range(fpipe):
            A.label(f"L_fok{k}")
            for m in range(4):
                for r in range(4):
                    A(f"v_add_f32 v{152+4*m+r}, v{sets[k]+4*m+r}, v{sets[k]+4*(m+4)+r}")
            if k != fpipe - 1: A("s_branch L_fsum")
        A.label("L_fsum")
        A.vm_reset()
    if fpipe: G = 152
    for step in ((2, 1) if fpipe else (4, 2, 1)):
        for m in range(step):
            for r in range(4):
                A(f"v_add_f32 v{G+4*m+r}, v{G+4*m+r}, v{G+4*(m+step)+r}")
    vs = [f"v{G+r}" for r in range(4)]; ts = [f"v{G+4+r}" for r in range(4)]
    for v in vs:
        A(f"v_add_f32_dpp {v}, {v}, {v} row_ror:8 row_mask:0xf bank_mask:0xf")
    xreduce("v_add_f32", vs, ts, 16)
    xreduce("v_add_f32", vs, ts, 32)
    A(f"v_cvt_pk_bf16_f32 v6, v{G}, v{G+1}")
    A(f"v_cvt_pk_bf16_f32 v7, v{G+2}, v{G+3}")
    setexec(0xff)
    A("buffer_store_dwordx2 v[6:7], v9, s[44:47], s70 offen")
    A("s_mov_b64 exec, -1")
    A("s_cmp_lg_u32 s2, 0")
    A("s_cbranch_scc1 L_Qend")
    A(f"v_mov_b32 v6, {sT}")
    A("s_mov_b64 exec, 1")
    A("buffer_store_dword v6, v2, s[52:55], 0 offen")
    A("s_mov_b64 exec, -1")
    if diag:
        if diag == 1: A("s_memrealtime s[96:97]")
        A("s_memrealtime s[94:95]")
        A("s_waitcnt lgkmcnt(0)")
        A("s_sub_u32 s60, s96, s78")
        A("s_add_u32 s60, s60, s94")
        A.label("L_diag")
        A("s_memrealtime s[94:95]")
        A("s_waitcnt lgkmcnt(0)")
        A("s_sub_u32 s61, s94, s60")
        A("s_cmp_lt_i32 s61, 0")
        A("s_cbranch_scc1 L_diag")
    A.label("L_Qend")
    if stamps:
        stamp(1)
        st["slots"].append((0, 78))
        stamp_flush()
    A("s_endpgm")

    PW, PACC, PA = 32, 112, 16
    def proj_loads(srdreg, flags, last=0):
        A("v_lshrrev_b32 v3, 4, v0")
        A("v_mul_u32_u24 v3, 5120, v3")
        A("v_and_b32 v4, 15, v0")
        A("v_lshl_add_u32 v3, v4, 4, v3")
        A("s_movk_i32 s63, 3840")
        for u in range(4):
            for seg in range(5):
                w = PW + 4 * (5 * u + seg)
                if last and 5 * u + seg == 20 - last: A("s_setprio 0")
                if u < 3:
                    A(f"buffer_load_dwordx4 v[{w}:{w+3}], v3, s[{srdreg}:{srdreg+3}], 0 offen offset:{u*1280+seg*256} {flags}", f"p{u}_{seg}")
                else:
                    A(f"buffer_load_dwordx4 v[{w}:{w+3}], v3, s[{srdreg}:{srdreg+3}], s63 offen offset:{seg*256} {flags}", f"p{u}_{seg}")
                if (5 * u + seg + 1) % wburst == 0: A("s_nop 0")
    def proj_addr(slot_sgpr):
        A("v_and_b32 v4, 15, v0")
        A("v_lshlrev_b32 v4, 5, v4")
        A("v_lshrrev_b32 v6, 4, v0")
        A("v_lshl_add_u32 v4, v6, 4, v4")
        A(f"v_add_u32 v4, {slot_sgpr}, v4")
    def proj_mfma(o01, o23):
        for u in range(4):
            a = PA + 4 * (u & 1)
            srcd = o01 if u < 2 else o23
            for j in range(4):
                A(f"v_perm_b32 v{a+j}, {srcd}, {srcd}, v{8 + 4*(u&1) + j}")
            for seg in range(5):
                w = PW + 4 * (5 * u + seg)
                d = PACC + 4 * seg
                A.wait_vm(f"p{u}_{seg}")
                c = "0" if u == 0 else f"v[{d}:{d+3}]"
                A(f"v_mfma_f32_16x16x32_bf16 v[{d}:{d+3}], v[{a}:{a+3}], v[{w}:{w+3}], {c}")
        setexec(0xffffffff)
        for seg in range(5):
            d = PACC + 4 * seg
            A(f"ds_write_b128 v4, v[{d}:{d+3}] offset:{AP + seg*512}")
        A("s_mov_b64 exec, -1")

    A.label("L_K"); cur["x"] = "s"; st["role"] = "k"
    stamp_reset(); A.vm_reset()
    if prio: A("s_setprio 2")
    A("s_sub_u32 s13, s3, 1")
    A(f"s_lshl_b32 s60, {sBH}, 20")
    A(f"s_lshr_b32 s61, {sBH}, 12")
    A(f"s_lshl_b32 s62, {sHALF}, 17")
    A("s_add_u32 s62, s62, 0xC0000")
    A("s_add_u32 s60, s60, s62")
    A("s_addc_u32 s61, s61, 0")
    srd(44, K, "s60", 0x20000, "s61")
    A("s_lshl_b32 s62, s13, 3")
    A(f"s_add_u32 s62, s62, {sRHO}")
    KR = 32
    Dt = [24, 28, 160, 164, 32, 36, 40, 44]
    if kdma:
        Dt = [24, 28, 132, 136, 140, 144, 148, 152]
        A("v_lshrrev_b32 v4, 4, v0")
        A("v_and_b32 v3, 15, v0")
        A("v_xor_b32 v5, v3, v4")
        for j in range(4):
            A(f"v_xor_b32 v6, {4*j}, v5")
            A("v_lshlrev_b32 v6, 4, v6")
            A(f"v_lshl_add_u32 v{156+j}, v4, 8, v6")
        A("s_lshl_b32 s15, s13, 15")
        A(f"s_add_u32 s15, s15, {KB}")
        if rnd_tiles: tile_init("s13", "s62", "s63", "s64")
        if onebar: A("s_barrier")
        stamp(24)
        for T in range(8):
            if rnd_tiles: tile_next("s62", "s63", "s64")
            else:
                A(f"s_add_u32 s60, s62, {T}")
                A("s_and_b32 s60, s60, 31")
                A("s_lshl_b32 s60, s60, 12")
            A(f"s_add_u32 m0, s15, {T*4096}")
            A("s_nop 0")
            for j in range(4):
                A(f"buffer_load_dwordx4 v{156+j}, s[44:47], s60 offen offset:{1024*j} {kf} lds", f"k{T}_{j}")
        bump(F_KI)
        stamp(14)
        srd(52, WS, size=WS_SIZE)
        for j in range(4):
            A(f"v_xor_b32 v6, {4*j}, v5")
            A("v_lshlrev_b32 v6, 4, v6")
            A(f"v_lshl_add_u32 v6, v3, 8, v6")
            A(f"v_add_u32 v{156+j}, s15, v6")
        A("v_lshlrev_b32 v4, 4, v4")
        spin(F_Q, 1, 6)
        for j in range(4):
            A(f"ds_read_b128 v[{8+4*j}:{8+4*j+3}], v4 offset:{QB + 64*j}")
        A(f"ds_read_b32 v5, v2 offset:{L_TW}")
        def kread(T):
            A.wait_vm(f"k{T}_3")
            if T == 7: stamp(8)
            for j in range(4):
                w = KR + 16 * (T % 3) + 4 * j
                A(f"ds_read_b128 v[{w}:{w+3}], v{156+j} offset:{T*4096}")
        kread(0)
        for T in range(8):
            if T < 7:
                kread(T + 1)
                A("s_waitcnt lgkmcnt(4)" if not (stamps and T == 6) else "s_waitcnt lgkmcnt(0)")
            else:
                A("s_waitcnt lgkmcnt(0)")
            for j in range(4):
                w = KR + 16 * (T % 3) + 4 * j
                d = Dt[T]
                c = "0" if j == 0 else f"v[{d}:{d+3}]"
                A(f"v_mfma_f32_16x16x32_bf16 v[{d}:{d+3}], v[{8+4*j}:{8+4*j+3}], v[{w}:{w+3}], {c}")
    else:
        A("v_and_b32 v3, 15, v0")
        A("v_lshlrev_b32 v3, 8, v3")
        A("v_lshrrev_b32 v4, 4, v0")
        A("v_lshl_add_u32 v3, v4, 4, v3")
        stamp(24)
        for T in range(8):
            A(f"s_add_u32 s60, s62, {T}")
            A("s_and_b32 s60, s60, 31")
            A("s_lshl_b32 s60, s60, 12")
            for j in range(4):
                w = KR + 16 * T + 4 * j
                A(f"buffer_load_dwordx4 v[{w}:{w+3}], v3, s[44:47], s60 offen offset:{64*j} {kf}", f"k{T}_{j}")
        bump(F_KI)
        stamp(14)
        srd(52, WS, size=WS_SIZE)
        A("v_lshlrev_b32 v4, 4, v4")
        spin(F_Q, 1, 6)
        for j in range(4):
            A(f"ds_read_b128 v[{8+4*j}:{8+4*j+3}], v4 offset:{QB + 64*j}")
        A(f"ds_read_b32 v5, v2 offset:{L_TW}")
        A("s_waitcnt lgkmcnt(0)")
        for T in range(8):
            for j in range(4):
                w = KR + 16 * T + 4 * j
                d = Dt[T]
                A.wait_vm(f"k{T}_{j}")
                if T == 7 and j == 3: stamp(8)
                c = "0" if j == 0 else f"v[{d}:{d+3}]"
                A(f"v_mfma_f32_16x16x32_bf16 v[{d}:{d+3}], v[{8+4*j}:{8+4*j+3}], v[{w}:{w+3}], {c}")
    A("s_mov_b32 s64, 0xffff0000")
    A("s_mov_b32 s65, 0xffff0000")
    A("s_mov_b32 s66, 0")
    A("s_mov_b32 s67, -1")
    for grp, dst in ((0, "v6"), (1, "v7")):
        d = Dt[4 * grp: 4 * grp + 4]
        A(f"v_cndmask_b32 v{d[0]}, v{d[0]}, v{d[1]}, s[64:65]")
        A(f"v_cndmask_b32 v{d[2]}, v{d[2]}, v{d[3]}, s[64:65]")
        A(f"v_cndmask_b32 {dst}, v{d[0]}, v{d[2]}, s[66:67]")
    A("v_cvt_pk_bf16_f32 v6, v6, v7")
    A("v_and_b32 v7, 0xffff0000, v6")
    A("v_lshlrev_b32 v6, 16, v6")
    A("s_mov_b32 s60, 0x3db504f3")
    A("v_mul_f32 v6, s60, v6")
    A("v_mul_f32 v7, s60, v7")
    A("v_cvt_pk_bf16_f32 v4, v6, v7")
    A("v_and_b32 v6, 7, v0")
    A("v_lshlrev_b32 v6, 3, v6")
    A("v_lshrrev_b32 v7, 3, v0")
    A("v_add_u32 v6, v6, v7")
    A("s_lshl_b32 s60, s13, 6")
    A("v_add_u32 v6, s60, v6")
    A("v_lshlrev_b32 v7, 3, v6")
    A(f"s_lshl_b32 s60, {sBH}, 1")
    A(f"s_add_u32 s60, s60, {sHALF}")
    A("s_lshl_b32 s60, s60, 11")
    A(f"s_add_u32 s60, s60, {SP_OFF}")
    if not spub_q: A("buffer_store_dwordx2 v[4:5], v7, s[52:55], s60 offen sc1", "sp")
    A("v_lshlrev_b32 v6, 2, v6")
    A(f"ds_write_b32 v6, v4 offset:{SB}")
    bump(F_S)
    stamp(4)
    A("v_mov_b32 v26, v5")
    if prio: A(f"s_setprio {wo_prio}")
    A(f"s_lshl_b32 s60, {sH}, 7")
    if v64:
        A(f"s_lshl_b32 s61, {sHALF}, 5")
        A("s_add_u32 s60, s60, s61")
        A("s_and_b32 s61, s13, 1")
        A("s_lshl_b32 s61, s61, 4")
        A("s_add_u32 s60, s60, s61")
        A("s_lshr_b32 s61, s13, 1")
        A("s_lshl_b32 s61, s61, 6")
        A("s_add_u32 s60, s60, s61")
    else:
        A(f"s_lshl_b32 s61, {sHALF}, 6")
        A("s_add_u32 s60, s60, s61")
        A("s_lshl_b32 s61, s13, 4")
        A("s_add_u32 s60, s60, s61")
    A("s_mul_i32 s60, s60, 1280")
    srd(48, WO, "s60", 20480)
    proj_loads(48, wflags, wo_last)
    stamp(17)
    if prio: A("s_setprio 3")
    make_sel(8, "v5", "v6", "v7")
    tag_consts()
    A("s_mul_i32 s14, s13, 2560")
    proj_addr("s14")
    A("v_lshrrev_b32 v5, 4, v0")
    A("v_lshlrev_b32 v5, 4, v5")
    A("s_lshl_b32 s60, s13, 6")
    A("v_add_u32 v5, s60, v5")
    A("v_lshlrev_b32 v27, 4, v0")
    A("s_mul_i32 s60, s13, 640")
    A("v_add_u32 v27, s60, v27")
    A("v_lshrrev_b32 v28, 3, v0")
    A("s_mul_i32 s60, s13, 5")
    A("v_add_u32 v28, s60, v28")
    A("v_lshlrev_b32 v28, 13, v28")
    A("v_and_b32 v7, 7, v0")
    A("v_lshl_add_u32 v28, v7, 4, v28")
    A(f"s_mul_i32 s68, {sB}, {20*8192}")
    A(f"s_lshl_b32 s60, {sI}, 7")
    A("s_add_u32 s68, s68, s60")
    A(f"s_add_u32 s68, s68, {FP_OFF}")
    rd = [f"ds_read_b128 v[{132+4*p}:{132+4*p+3}], v5 offset:{OP + 256*p}" for p in range(8)]
    if merged:
        spin(F_O, 3, 7, sleep=0)
        spin_read(F_O, 4, 7, rd)
        stamp(16)
    else:
        spin(F_O, 4, 7, sleep=0)
        stamp(16)
        for r in rd: A(r)
        A("s_waitcnt lgkmcnt(0)")
    for step in (4, 2, 1):
        for p in range(step):
            for r in range(4):
                A(f"v_add_f32 v{132+4*p+r}, v{132+4*p+r}, v{132+4*(p+step)+r}")
    A("v_cvt_pk_bf16_f32 v24, v132, v133")
    A("v_cvt_pk_bf16_f32 v25, v134, v135")
    proj_mfma("v24", "v25")
    bump(F_A)
    stamp(10)
    cur["x"] = "f"
    rd = [f"ds_read_b128 v[{32+4*s}:{32+4*s+3}], v27 offset:{AP + 2560*s}" for s in range(6)] + [f"ds_read_b64 v[56:57], v2 offset:{L_G}"]
    if merged:
        setexec(0xffffffffff)
        spin_read(F_A, 6, 8, rd)
        stamp(18)
    else:
        spin(F_A, 6, 8, sleep=0)
        stamp(18)
        setexec(0xffffffffff)
        for r in rd: A(r)
        A("s_waitcnt lgkmcnt(0)")
    for r in range(4):
        A(f"v_add_f32 v{32+r}, v{32+r}, v{36+r}")
        A(f"v_add_f32 v{40+r}, v{40+r}, v{44+r}")
        A(f"v_add_f32 v{48+r}, v{48+r}, v{52+r}")
    for r in range(4):
        A(f"v_add_f32 v{32+r}, v{32+r}, v{40+r}")
        A(f"v_mul_f32 v{48+r}, v{48+r}, v57")
    for r in range(4):
        A(f"v_fma_f32 v{32+r}, v{32+r}, v56, v{48+r}")
    for r in range(4):
        embed(f"v{64+r}", f"v{32+r}", r, "v26")
    A("buffer_store_dwordx4 v[64:67], v28, s[52:55], s68 offen sc1")
    A("s_mov_b64 exec, -1")
    bump(F_PUB)
    stamp(11)
    if stamps:
        A("s_cmp_lg_u32 s3, 1")
        A("s_cbranch_scc1 L_exit")
        stamp_flush()
    A("s_endpgm")

    A.label("L_GU")
    stamp_reset()
    if dynf:
        A("s_barrier")
        get_f()
        A(f"s_cmp_ge_u32 {sF}, 27")
        A("s_cbranch_scc1 L_exit")
        A("s_branch L_GUwork")
    A(f"s_cmp_lt_u32 {sF}, 27")
    A("s_cbranch_scc1 L_GUwork")
    if gu_first: A("s_barrier")
    else: bump(F_KI)
    A("s_endpgm")
    A.label("L_GUwork")
    if prio: A("s_setprio 3")
    stage1("gu")
    stamp(21)
    A("v_lshrrev_b32 v5, 2, v0")
    A("v_lshlrev_b32 v5, 7, v5")
    A("v_and_b32 v6, 3, v0")
    A("v_lshl_add_u32 v5, v6, 4, v5")
    A(f"s_lshl_b32 s60, {sH}, 14")
    A(f"s_lshl_b32 s61, {sB}, 12")
    A("s_add_u32 s60, s60, s61")
    A(f"s_lshl_b32 s61, {sHALF}, 6")
    A("s_add_u32 s60, s60, s61")
    A(f"s_add_u32 s68, s60, {GP_OFF}")
    A("s_sleep 16")
    A("s_mov_b32 s61, 0")
    A.label("L_gpoll")
    A("buffer_load_dwordx4 v[60:63], v5, s[52:55], s68 offen sc1")
    A("buffer_load_dwordx4 v[64:67], v5, s[52:55], s68 offen offset:2048 sc1")
    A.wait_vm_all()
    if nib: check4([60, 64], 100, "L_gpoll", 9, sleep=16)
    else:
        check_words(extract([60, 64], 100), "v6", "v7", "L_gpoll", 9, sleep=16)
        unmask([60, 64])
    vs = [f"v{60+r}" for r in range(4)]; ts = [f"v{64+r}" for r in range(4)]
    for r in range(4): A(f"v_add_f32 v{60+r}, v{60+r}, v{64+r}")
    xreduce("v_add_f32", vs, ts, 16)
    xreduce("v_add_f32", vs, ts, 32)
    A("v_cvt_pk_bf16_f32 v64, v60, v61")
    A("v_cvt_pk_bf16_f32 v65, v62, v63")
    A("v_lshlrev_b32 v60, 16, v64")
    A("v_and_b32 v61, 0xffff0000, v64")
    A("v_lshlrev_b32 v62, 16, v65")
    A("v_and_b32 v63, 0xffff0000, v65")
    for r in range(4):
        A(f"v_mov_b32_dpp v{64+r}, v{60+r} row_shl:4 row_mask:0xf bank_mask:0xf")
    kk = -2.0 * math.sqrt(2.0 / math.pi) * math.log2(math.e)
    A(f"s_mov_b32 s60, {f2u(0.044715):#x}")
    A(f"s_mov_b32 s61, {f2u(kk):#x}")
    for r in range(4):
        x, t = f"v{60+r}", f"v{68+r}"
        A(f"v_mul_f32 {t}, {x}, {x}")
        A(f"v_mul_f32 {t}, {t}, {x}")
        A(f"v_fma_f32 {t}, {t}, s60, {x}")
        A(f"v_mul_f32 {t}, s61, {t}")
        A(f"v_exp_f32 {t}, {t}")
        A(f"v_add_f32 {t}, 1.0, {t}")
        A(f"v_rcp_f32 {t}, {t}")
        A(f"v_mul_f32 {x}, {x}, {t}")
    A("v_cvt_pk_bf16_f32 v68, v60, v61")
    A("v_cvt_pk_bf16_f32 v69, v62, v63")
    A("v_lshlrev_b32 v60, 16, v68")
    A("v_and_b32 v61, 0xffff0000, v68")
    A("v_lshlrev_b32 v62, 16, v69")
    A("v_and_b32 v63, 0xffff0000, v69")
    for r in range(4): A(f"v_mul_f32 v{60+r}, v{60+r}, v{64+r}")
    A("v_cvt_pk_bf16_f32 v60, v60, v61")
    A("v_cvt_pk_bf16_f32 v61, v62, v63")
    A("v_and_b32 v6, 3, v0")
    A("v_lshlrev_b32 v6, 4, v6")
    A("v_bfe_u32 v7, v0, 3, 1")
    A("v_lshl_add_u32 v6, v7, 3, v6")
    setexec(0x0f0f)
    A(f"ds_write_b64 v6, v[60:61] offset:{HB}")
    A("s_mov_b64 exec, -1")
    bump(F_H)
    stamp(12)
    stamp_flush()
    A("s_endpgm")

    A.label("L_V")
    stamp_reset(); A.vm_reset()
    if prio: A(f"s_setprio {v_prio}")
    A("s_sub_u32 s13, s3, 6")
    A(f"s_lshl_b32 s60, {sBH}, 20")
    A(f"s_lshr_b32 s61, {sBH}, 12")
    A(f"s_lshl_b32 s62, {sHALF}, {6 if v64 else 7}")
    A("s_add_u32 s62, s62, 0xC0000")
    A("s_add_u32 s60, s60, s62")
    A("s_addc_u32 s61, s61, 0")
    srd(44, V, "s60", 0x40000 - (64 if v64 else 128), "s61")
    A("v_lshrrev_b32 v3, 3, v0")
    A("v_lshlrev_b32 v4, 5, v3")
    if v64:
        A("v_lshrrev_b32 v3, 2, v0")
        A("v_lshlrev_b32 v3, 7, v3")
        A("v_and_b32 v5, 3, v0")
    else:
        A("v_lshlrev_b32 v3, 8, v3")
        A("v_and_b32 v5, 7, v0")
    A("v_lshl_add_u32 v3, v5, 4, v3")
    A("s_and_b32 s15, s13, 1")
    A("s_lshl_b32 s15, s15, 4")
    A(f"s_add_u32 s15, s15, {sRHO}")
    A("s_lshr_b32 s63, s13, 1")
    A("s_lshl_b32 s63, s63, 17")
    make_sel(8, "v5", "v6", "v7")
    VR = 32
    order = []
    spin(F_KI, KI_N, 13)
    stamp(19)
    for kk in range(2):
        if rnd_tiles:
            A("s_and_b32 s15, s13, 1")
            A("s_lshl_b32 s15, s15, 1")
            if vdesync:
                A(f"s_xor_b32 s67, {sHALF}, {kk}")
                tile_init("s15", "s64", "s65", "s66", "s67")
            else:
                tile_init("s15", "s64", "s65", "s66", kk)
            A("s_add_u32 s65, s65, s63")
        for T in range(8):
            if rnd_tiles: tile_next("s64", "s65", "s66")
            else:
                A(f"s_add_u32 s60, s15, {8*kk+T}")
                A("s_and_b32 s60, s60, 31")
                A("s_lshl_b32 s60, s60, 12")
                A("s_add_u32 s60, s60, s63")
            for u1 in range(2):
                n = len(order)
                w = VR + 4 * n
                par = T >> 2; u = 2 * (T & 3) + u1
                order.append((kk, par, u))
                A(f"buffer_load_dwordx4 v[{w}:{w+3}], v3, s[44:47], s60 offen offset:{2048*u1} {vf}", f"v{n}")
                if vburst == 1 and u1 == 0: A("s_nop 0")
    stamp(15)
    if prio: A("s_setprio 3")
    A("s_lshl_b32 s14, s13, 9")
    A("v_add_u32 v3, s14, v4")
    if vdesync:
        A(f"s_lshl_b32 s67, {sHALF}, 8")
        A("v_add_u32 v4, s67, v3")
        A("s_xor_b32 s67, s67, 256")
        A("v_add_u32 v5, s67, v3")
    spin(F_P, 1, 10)
    for kk in range(2):
        for hh in range(2):
            p = 16 + 8 * kk + 4 * hh
            if vdesync: A(f"ds_read_b128 v[{p}:{p+3}], v{4+kk} offset:{PB + 16*hh}")
            else: A(f"ds_read_b128 v[{p}:{p+3}], v3 offset:{PB + 256*kk + 16*hh}")
    A("s_waitcnt lgkmcnt(0)")
    A("v_and_b32 v3, 7, v0")
    A("v_lshlrev_b32 v3, 5, v3")
    A("v_bfe_u32 v1, v0, 4, 1")
    A("v_lshl_add_u32 v3, v1, 4, v3")
    A("v_lshrrev_b32 v1, 5, v0")
    A("v_lshl_add_u32 v3, v1, 8, v3")
    A("v_add_u32 v3, s14, v3")
    for n, (kk, par, u) in enumerate(order):
        w = VR + 4 * n
        a = 160 + 4 * (n & 1)
        pd = 16 + 8 * kk + u
        for j in range(4):
            A(f"v_perm_b32 v{a+j}, v{pd}, v{pd}, v{8 + 4*par + j}")
        A.wait_vm(f"v{n}")
        if n == 31: stamp(9)
        c = "0" if n == 0 else "v[4:7]"
        A(f"v_mfma_f32_16x16x32_bf16 v[4:7], v[{a}:{a+3}], v[{w}:{w+3}], {c}")
    A("v_mov_b32 v1, 1")
    A("s_mov_b32 exec_lo, 0x00ff00ff")
    A("s_mov_b32 exec_hi, 0xff00ff00")
    A(f"ds_write_b128 v3, v[4:7] offset:{OP}")
    A("s_mov_b64 exec, 1")
    A(f"ds_add_u32 v2, v1 offset:{F_O}")
    A("s_mov_b64 exec, -1")
    stamp(7)
    if stamps:
        A("s_cmp_lg_u32 s3, 6")
        A("s_cbranch_scc1 L_exit")
        stamp_flush()
    A("s_endpgm")

    A.label("L_D")
    stamp_reset(); A.vm_reset()
    if prio and d_prio: A(f"s_setprio {d_prio}")
    A("s_sub_u32 s13, s3, 10")
    A("s_cmp_lg_u32 s13, 0")
    A("s_cbranch_scc1 L_ids" if xcc else "s_cbranch_scc1 L_nogate")
    A(f"s_mul_i32 s60, {sB}, 1280")
    srd(44, X, "s60", 1280)
    srd(48, GW, size=1280)
    A("v_lshlrev_b32 v3, 5, v0")
    A("buffer_load_dwordx4 v[8:11], v3, s[44:47], 0 offen")
    A("buffer_load_dwordx4 v[12:15], v3, s[44:47], 0 offen offset:16")
    A("buffer_load_dwordx4 v[16:19], v3, s[48:51], 0 offen")
    A("buffer_load_dwordx4 v[20:23], v3, s[48:51], 0 offen offset:16")
    A.wait_vm_all()
    A("v_mov_b32 v4, 0")
    for k in range(8):
        A(f"v_lshlrev_b32 v24, 16, v{8+k}")
        A(f"v_and_b32 v25, 0xffff0000, v{8+k}")
        A(f"v_lshlrev_b32 v26, 16, v{16+k}")
        A(f"v_and_b32 v27, 0xffff0000, v{16+k}")
        A("v_mul_f32 v24, v24, v26")
        A("v_mul_f32 v25, v25, v27")
        A("v_cvt_pk_bf16_f32 v24, v24, v25")
        A("v_and_b32 v25, 0xffff0000, v24")
        A("v_lshlrev_b32 v24, 16, v24")
        A("v_add_f32 v4, v4, v24")
        A("v_add_f32 v4, v4, v25")
    rowreduce("v_add_f32", "v4", "v5")
    A("v_cvt_pk_bf16_f32 v4, v4, v4")
    A("v_lshlrev_b32 v4, 16, v4")
    A("v_mul_f32 v4, 0xbfb8aa3b, v4")
    A("v_exp_f32 v4, v4")
    A("v_add_f32 v4, 1.0, v4")
    A("v_rcp_f32 v4, v4")
    A("v_cvt_pk_bf16_f32 v4, v4, v4")
    A("v_lshlrev_b32 v4, 16, v4")
    A("v_sub_f32 v5, 1.0, v4")
    A("v_cvt_pk_bf16_f32 v5, v5, v5")
    A("v_lshlrev_b32 v5, 16, v5")
    A("s_mov_b64 exec, 1")
    A(f"ds_write_b64 v2, v[4:5] offset:{L_G}")
    A("s_mov_b64 exec, -1")
    if xcc:
        A("s_branch L_nogate")
        A.label("L_ids")
        cur["x"] = "x"
        if prio: A("s_setprio 3")
        if onebar:
            A("s_mov_b32 s13, 1")
            A("v_lshlrev_b32 v1, 2, v0")
            A("ds_write_b32 v1, v2")
            A("s_waitcnt lgkmcnt(0)")
            load_tag()
        if dynf:
            srd(44, DBG, size=256)
            A("v_mov_b32 v8, 1")
            A(f"s_cmp_lg_u32 {sR}, 0")
            A("s_cbranch_scc1 L_noclaim")
            A("s_mov_b64 exec, 1")
            A("buffer_atomic_add v8, v2, s[44:47], 0 offen offset:128 sc0")
            A("s_mov_b64 exec, -1")
            A.label("L_noclaim")
            A("s_barrier")
        srd(52, WS, size=WS_SIZE)
        A("s_getreg_b32 s14, hwreg(HW_REG_XCC_ID)")
        make_tag()
        A("s_and_b32 s14, s14, 15")
        A("v_mov_b32 v4, s14")
        if dynf:
            A.wait_vm_all()
            A("v_lshl_or_b32 v4, v8, 8, v4")
        A(f"v_mov_b32 v5, {sT}")
        A(f"s_lshl_b32 s68, {sH}, 7")
        A(f"s_add_u32 s68, s68, {XP_OFF}")
        A(f"s_lshl_b32 s60, {sR}, 3")
        A("s_add_u32 s69, s68, s60")
        A("s_mov_b64 exec, 1")
        A("buffer_store_dwordx2 v[4:5], v2, s[52:55], s69 offen sc1")
        A("s_mov_b64 exec, -1")
        if onebar and not dynf: A("s_barrier")
        A("v_and_b32 v3, 7, v0")
        A("v_lshlrev_b32 v3, 3, v3")
        A("s_mov_b32 s61, 0")
        A.label("L_xpoll")
        A("buffer_load_dwordx2 v[6:7], v3, s[52:55], s68 offen sc1")
        A.wait_vm_all()
        check_words(["v7"], "v8", "v9", "L_xpoll", 16)
        if dynf:
            A("v_lshrrev_b32 v8, 8, v6")
            A("v_and_b32 v6, 0xff, v6")
            A("s_mov_b64 exec, 1")
            A(f"ds_write_b32 v2, v8 offset:{L_F}")
            A("s_mov_b64 exec, -1")
        A("v_cmp_ne_u32 vcc, s14, v6")
        A("s_cmp_eq_u64 vcc, 0")
        A("s_cselect_b32 s60, 1, 2")
        if forcemode: A(f"s_mov_b32 s60, {forcemode}")
        A("v_mov_b32 v4, s60")
        A("s_mov_b64 exec, 1")
        A(f"ds_write_b32 v2, v4 offset:{F_X}")
        A("s_mov_b64 exec, -1")
        stamp(25)
        stamp_flush()
        A(f"s_setprio {d_prio}")
    A.label("L_nogate")
    A.vm_reset()
    if dynf: get_f()
    A("s_add_u32 s14, s13, 4")
    A("s_mul_i32 s14, s14, 2560")
    A(f"s_cmp_lt_u32 {sF}, 27")
    A("s_cbranch_scc1 L_Dwork")
    for k in range(4): A(f"v_mov_b32 v{8+k}, 0")
    A("v_lshlrev_b32 v4, 4, v0")
    A("v_add_u32 v4, s14, v4")
    A(f"ds_write_b128 v4, v[8:11] offset:{AP}")
    A(f"ds_write_b128 v4, v[8:11] offset:{AP+1024}")
    setexec(0xffffffff)
    A(f"ds_write_b128 v4, v[8:11] offset:{AP+2048}")
    A("s_mov_b64 exec, -1")
    bump(F_A)
    A("s_endpgm")
    A.label("L_Dwork")
    A(f"s_lshl_b32 s60, {sFI}, 5")
    A("s_lshl_b32 s61, s13, 4")
    A("s_add_u32 s60, s60, s61")
    A("s_mul_i32 s60, s60, 1280")
    srd(48, WD, "s60", 20480)
    make_sel(8, "v5", "v6", "v7")
    spin(F_KI, KI_N, 14)
    proj_loads(48, wflags)
    proj_addr("s14")
    A("v_lshrrev_b32 v5, 4, v0")
    A("v_lshlrev_b32 v5, 3, v5")
    A("s_lshl_b32 s60, s13, 5")
    A("v_add_u32 v5, s60, v5")
    spin(F_H, 1, 11)
    A(f"ds_read_b64 v[24:25], v5 offset:{HB}")
    A("s_waitcnt lgkmcnt(0)")
    proj_mfma("v24", "v25")
    bump(F_A)
    A("s_endpgm")

    A.label("L_fail")
    srd(44, DBG, size=256)
    A("s_lshl_b32 s60, s62, 2")
    A("v_mov_b32 v1, 1")
    A("s_mov_b64 exec, 1")
    A("buffer_atomic_add v1, v2, s[44:47], s60 offen")
    A.label("L_exit")
    A("s_endpgm")

    nv = (A.maxv + 7) // 8 * 8
    assert nv <= 168, nv
    A.raw('.section .rodata,"a"')
    A.raw(".p2align 6")
    A.raw(f".amdhsa_kernel {KN}_kernel")
    A.raw(f"  .amdhsa_next_free_vgpr {nv}")
    A.raw(f"  .amdhsa_next_free_sgpr {102}")
    A.raw(f"  .amdhsa_accum_offset {nv}")
    A.raw("  .amdhsa_group_segment_fixed_size 0")
    A.raw("  .amdhsa_kernarg_size 104")
    A.raw("  .amdhsa_user_sgpr_count 2")
    A.raw("  .amdhsa_user_sgpr_kernarg_segment_ptr 1")
    A.raw("  .amdhsa_system_sgpr_workgroup_id_x 1")
    A.raw(".end_amdhsa_kernel")
    open(name, "w").write(A.text())

if __name__ == "__main__":
    kw = dict(gu_first=True, rnd_tiles=0x85EBCA6B, d_prio=1, fpipe=3, wo_last=5)
    gen("t_a.s", nsplit=(24, 16), **kw)
    gen("t_b.s", nsplit=(20, 20), **kw)
    gen("t_c.s", nsplit=(24, 16), nib=False, **kw)
```

```python
import sys, math, struct
from asmdsl import Asm
KN = "gated_mix__sliding_block_cached__glu_gated_geglu__decode"
f2u = lambda f: struct.unpack("<I", struct.pack("<f", f))[0]

QP_OFF = 0x100000
GP_OFF = 0x180000
SP_OFF = 0x200000
FP_OFF = 0x280000
XP_OFF = 0x80000
WS_SIZE = 0x400000
F_Q, F_S, F_P, F_O, F_H, F_A, F_PUB, F_KI = 0, 4, 8, 12, 16, 20, 24, 28
L_TW, L_G, L_OMG = 32, 40, 44
F_X = 48
L_F = 52
QB, HB, SB, PB, OP, AP = 0x100, 0x200, 0x400, 0x800, 0x1000, 0x1800
KB = 0x6000
LDS_BYTES = KB + 0x20000
SPIN_LIMIT = 400000
POLL_LIMIT = 40000

def gen(name, stamps=False, wflags="nt", s1flags="nt", prio=True, wo_prio=1, v_prio=1, d_prio=0,
        kburst=4, vburst=2, wburst=1, gu_first=False, slp=1, nocheck=False, klin=False, nost=False, nold=False,
        kf="nt", vf="nt", qdelay=0, off="", kdma=True, spub_q=True, rnd=True, merged=True, skip="", hmap=True, plain="", xcc=True, forcemode=0, rhomode=0, hmap2=False, rnd_tiles=0, vdesync=False, v64=False, wo_last=0, fpipe=0, diag=None, onebar=True, nsplit=(20, 20), dynf=False, nib=True, pref=1, CODEKB=15):
    assert onebar and not dynf
    assert gu_first and xcc
    skip = skip.split(",")
    cur = {"x": "?"}
    _A = Asm()
    class Wrap:
        def __getattr__(self, k): return getattr(_A, k)
        def __call__(self, text, tag=None):
            if "s[52:55]" in text and text.startswith("buffer_store") and text.endswith("sc1") and nost: return
            if "s[52:55]" in text and text.startswith("buffer_load") and text.endswith("sc1") and nold: return
            if "s[52:55]" in text and text.endswith("sc1"):
                key = cur["x"] + ("s" if text.startswith("buffer_store") else "l")
                if key in off.split(","): return
                if key in plain.split(","): text = text[:-4]
            _A(text, tag)
    A = Wrap()
    hdr = open("cdna_kernels/" + KN + ".s.ref").read().split("\n")
    for l in hdr:
        if l.startswith(";") and "@launch" not in l: A.raw(l)
        if not l.startswith(";"): break
    A.raw(f"; @launch grid=(256,1,1) block=(768,1,1) lds={LDS_BYTES if kdma else KB}")
    A.raw('.amdgcn_target "amdgcn-amd-amdhsa--gfx950"')
    A.raw(".text")
    A.raw(f".globl {KN}_kernel")
    A.raw(".p2align 8")
    A.raw(f".type {KN}_kernel,@function")
    A.raw(f"{KN}_kernel:")

    X, K, V, WQ, WO, WG, WU, WD, GW, OUT, DBG, WS = 16, 18, 20, 22, 24, 28, 30, 32, 34, 36, 38, 40
    sB, sI, sH, sHALF, sBH, sR, sRHO, sT = "s4", "s5", "s6", "s7", "s8", "s9", "s10", "s11"
    st = {"n": 0, "slots": []}
    def stamp(slot):
        if diag and diag == slot and st.get("role") == "q": A("s_memrealtime s[96:97]")
        if not stamps: return
        k = 80 + 2 * st["n"]; st["n"] += 1; st["slots"].append((slot, k))
        assert k + 1 <= 97
        A(f"s_memrealtime s[{k}:{k+1}]")
    def stamp_reset():
        st["n"] = 0; st["slots"] = []
    def stamp_flush():
        if not stamps or not st["slots"]: return
        A("s_waitcnt lgkmcnt(0)")
        A(f"s_add_u32 s72, s{WS}, 0x10000000")
        A(f"s_addc_u32 s73, s{WS+1}, 0")
        A("s_mov_b32 s74, 0x100000")
        A("s_mov_b32 s75, 0x20000")
        A("s_lshl_b32 s76, s2, 8")
        A("s_mov_b64 exec, 1")
        for slot, k in st["slots"]:
            A(f"v_mov_b32 v4, s{k}")
            A(f"v_mov_b32 v5, s{k+1}")
            A(f"buffer_store_dwordx2 v[4:5], v2, s[72:75], s76 offen offset:{slot*8}")
        A("s_mov_b64 exec, -1")
        stamp_reset()

    def srd(d, base, off_lo=None, size=None, off_hi=None):
        if {WQ: "q", K: "k", V: "v", WO: "w", WD: "w"}.get(base) in skip: size = 0
        if off_lo is None:
            A(f"s_mov_b32 s{d}, s{base}")
            A(f"s_mov_b32 s{d+1}, s{base+1}")
        else:
            A(f"s_add_u32 s{d}, s{base}, {off_lo}")
            A(f"s_addc_u32 s{d+1}, s{base+1}, {off_hi if off_hi is not None else 0}")
        A(f"s_mov_b32 s{d+2}, {size}")
        A(f"s_mov_b32 s{d+3}, 0x20000")

    def setexec(mask):
        A(f"s_mov_b32 exec_lo, {mask & 0xffffffff:#x}")
        A(f"s_mov_b32 exec_hi, {mask >> 32:#x}")

    def spin(flag, val, code, sleep=None, vt="v1"):
        if sleep is None: sleep = slp
        L = A.newlabel("L_spin"); D = A.newlabel("L_spind")
        A("s_mov_b32 s61, 0")
        A.label(L)
        A(f"ds_read_b32 {vt}, v2 offset:{flag}")
        A("s_waitcnt lgkmcnt(0)")
        A(f"v_readfirstlane_b32 s60, {vt}")
        A(f"s_cmp_ge_u32 s60, {val}")
        A(f"s_cbranch_scc1 {D}")
        if sleep: A(f"s_sleep {sleep}")
        A("s_add_u32 s61, s61, 1")
        A(f"s_cmp_lt_u32 s61, {SPIN_LIMIT}")
        A(f"s_cbranch_scc1 {L}")
        A(f"s_mov_b32 s62, {code}")
        A("s_branch L_fail")
        A.label(D)

    def spin_read(flag, val, code, reads):
        L = A.newlabel("L_spin"); D = A.newlabel("L_spind")
        A("s_mov_b32 s61, 0")
        A.label(L)
        A(f"ds_read_b32 v1, v2 offset:{flag}")
        for r in reads: A(r)
        A("s_waitcnt lgkmcnt(0)")
        A(f"v_readfirstlane_b32 s60, v1")
        A(f"s_cmp_ge_u32 s60, {val}")
        A(f"s_cbranch_scc1 {D}")
        A("s_add_u32 s61, s61, 1")
        A(f"s_cmp_lt_u32 s61, {SPIN_LIMIT}")
        A(f"s_cbranch_scc1 {L}")
        A(f"s_mov_b32 s62, {code}")
        A("s_branch L_fail")
        A.label(D)

    def bump(flag, vone="v1"):
        A(f"v_mov_b32 {vone}, 1")
        A("s_mov_b64 exec, 1")
        A(f"ds_add_u32 v2, {vone} offset:{flag}")
        A("s_mov_b64 exec, -1")

    def make_sel(base, t0, t1, t2):
        A(f"v_and_b32 {t0}, 1, v0")
        A(f"v_cmp_eq_u32 vcc, 1, {t0}")
        A(f"v_mov_b32 {t1}, 0x0c0c0100")
        A(f"v_mov_b32 {t2}, 0x01000c0c")
        A(f"v_cndmask_b32 {t1}, {t1}, {t2}, vcc")
        A(f"v_mov_b32 {t0}, 0x0c0c0302")
        A(f"v_mov_b32 {t2}, 0x03020c0c")
        A(f"v_cndmask_b32 {t2}, {t0}, {t2}, vcc")
        A(f"v_bfe_u32 {t0}, v0, 1, 2")
        for j in range(4):
            A(f"v_cmp_eq_u32 vcc, {j}, {t0}")
            A(f"v_mov_b32 v{base+j}, 0x0c0c0c0c")
            A(f"v_mov_b32 v{base+4+j}, 0x0c0c0c0c")
            A(f"v_cndmask_b32 v{base+j}, v{base+j}, {t1}, vcc")
            A(f"v_cndmask_b32 v{base+4+j}, v{base+4+j}, {t2}, vcc")

    def check_words(regs, t0, t1, retry_label, code, cnt="s61", sleep=0):
        if nocheck: return
        if len(regs) == 1:
            A(f"v_cmp_ne_u32 s[64:65], {sT}, {regs[0]}")
        else:
            A(f"v_min_u32 {t0}, {regs[0]}, {regs[1]}")
            A(f"v_max_u32 {t1}, {regs[0]}, {regs[1]}")
            for k in range(2, len(regs), 2):
                A(f"v_min3_u32 {t0}, {t0}, {regs[k]}, {regs[k+1]}")
                A(f"v_max3_u32 {t1}, {t1}, {regs[k]}, {regs[k+1]}")
            A(f"v_cmp_ne_u32 vcc, {sT}, {t0}")
            A(f"v_cmp_ne_u32 s[64:65], {sT}, {t1}")
            A("s_or_b64 s[64:65], s[64:65], vcc")
        D = A.newlabel("L_tagok")
        A("s_cmp_eq_u64 s[64:65], 0")
        A(f"s_cbranch_scc1 {D}")
        if sleep: A(f"s_sleep {sleep}")
        A(f"s_add_u32 {cnt}, {cnt}, 1")
        A(f"s_cmp_lt_u32 {cnt}, {POLL_LIMIT}")
        A(f"s_cbranch_scc1 {retry_label}")
        A(f"s_mov_b32 s62, {code}")
        A("s_branch L_fail")
        A.label(D)

    def tag_consts():
        for k in range(4): A(f"s_mov_b32 s{56+k}, {0x07060500 + k:#x}")
        A("s_mov_b32 s42, 0x0c0c0400")
        A("s_mov_b32 s43, 0x04000c0c")
    def embed(dst, src, k, vT):
        if rnd:
            A(f"v_add_u32 {dst}, 0x80, {src}")
            src = dst
        A(f"v_perm_b32 {dst}, {src}, {vT}, s{56+k}")
    def embed4(dst, src, k):
        A(f"v_add_u32 {dst}, 8, {src}")
        if k == 0: A(f"v_bfi_b32 {dst}, 15, {sT}, {dst}")
        else:
            A(f"s_lshr_b32 s60, {sT}, {8*k}")
            A(f"v_bfi_b32 {dst}, 15, s60, {dst}")
    def check4(groups, tmpbase, retry, code, sleep=0):
        words = extract(groups, tmpbase)
        if not nocheck:
            A("s_mov_b32 s60, 0x0f0f0f0f")
            A(f"v_mov_b32 v6, {sT}")
            for wd in words: A(f"v_bfi_b32 {wd}, s60, {wd}, v6")
        check_words(words, "v6", "v7", retry, code, sleep=sleep)
        for g in groups:
            for r in range(4): A(f"v_and_b32 v{g+r}, 0xfffffff0, v{g+r}")
    def unmask(groups):
        if not rnd: return
        for g in groups:
            for r in range(4): A(f"v_and_b32 v{g+r}, 0xffffff00, v{g+r}")
    def extract(groups, tmpbase):
        out = []
        if nocheck: return out
        for n, g in enumerate(groups):
            a, b = tmpbase + 2 * n, tmpbase + 2 * n + 1
            A(f"v_perm_b32 v{a}, v{g+1}, v{g}, s42")
            A(f"v_perm_b32 v{b}, v{g+3}, v{g+2}, s43")
        for n, g in enumerate(groups):
            a, b = tmpbase + 2 * n, tmpbase + 2 * n + 1
            A(f"v_or_b32 v{a}, v{a}, v{b}")
            out.append(f"v{a}")
        return out

    def wait_mode():
        if not xcc: return
        spin(F_X, 1, 15)
        A("s_mov_b32 s77, s60")
    def get_f():
        spin(F_X, 1, 17)
        A(f"ds_read_b32 v1, v2 offset:{L_F}")
        A("s_waitcnt lgkmcnt(0)")
        A(f"v_readfirstlane_b32 {sF}, v1")
        A(f"s_lshl_b32 {sFI}, {sF}, 1")
        A(f"s_add_u32 {sFI}, {sFI}, {sHALF}")
    def pub_stores(stores):
        if not xcc:
            for t in stores: A(t + " sc1")
            return
        Lr = A.newlabel("L_pubr"); Ld = A.newlabel("L_pubd")
        A("s_cmp_lg_u32 s77, 1")
        A(f"s_cbranch_scc1 {Lr}")
        for t in stores: _A(t)
        A(f"s_branch {Ld}")
        A.label(Lr)
        for t in stores: A(t + " sc1")
        A.label(Ld)

    def tile_init(skw, slo, shi, sa, add=0):
        A(f"s_add_u32 s60, {skw}, {add}")
        A(f"s_lshl_b32 {slo}, s60, 1")
        A(f"s_add_u32 {slo}, {slo}, {sRHO}")
        A(f"s_lshr_b32 {shi}, {sRHO}, 3")
        A(f"s_add_u32 {shi}, {shi}, s60")
        A(f"s_and_b32 {shi}, {shi}, 3")
        A(f"s_lshl_b32 {shi}, {shi}, 15")
        A(f"s_lshr_b32 {sa}, {sRHO}, 4")
        A(f"s_and_b32 {sa}, {sa}, 6")
        A(f"s_or_b32 {sa}, {sa}, 1")
    def tile_next(slo, shi, sa):
        A(f"s_and_b32 s60, {slo}, 7")
        A("s_lshl_b32 s60, s60, 12")
        A(f"s_add_u32 s60, s60, {shi}")
        A(f"s_add_u32 {slo}, {slo}, {sa}")

    def rowreduce(op, v, t):
        for sh in (1, 2, 4, 8):
            A(f"{op}_dpp {v}, {v}, {v} row_ror:{sh} row_mask:0xf bank_mask:0xf")
        xreduce(op, [v], [t], 16); xreduce(op, [v], [t], 32)
    def xreduce(op, vs, ts, w):
        for v, t in zip(vs, ts): A(f"v_mov_b32 {t}, {v}")
        for v, t in zip(vs, ts): A(f"v_permlane{w}_swap_b32 {v}, {t}")
        for v, t in zip(vs, ts): A(f"{op} {v}, {v}, {t}")

    def load_tag():
        A(f"s_load_dword s12, s[{WS}:{WS+1}], 0")
    def make_tag():
        A("s_waitcnt lgkmcnt(0)")
        A("s_and_b32 s60, s12, 0x7f7f7f7f")
        A("s_add_u32 s60, s60, 0x01010101")
        A("s_and_b32 s61, s12, 0x80808080")
        A(f"s_xor_b32 {sT}, s60, s61")

    A("s_cmp_ge_u32 s2, 256")
    A("s_cbranch_scc1 L_exit")
    A("s_load_dwordx16 s[16:31], s[0:1], 0")
    A("s_load_dwordx8 s[32:39], s[0:1], 64")
    A("s_load_dwordx2 s[40:41], s[0:1], 96")
    if stamps or diag: A("s_memrealtime s[78:79]")
    A("v_lshrrev_b32 v1, 6, v0")
    A("v_and_b32 v0, 63, v0")
    A("v_mov_b32 v2, 0")
    A("v_readfirstlane_b32 s3, v1")
    sF, sFI = "s100", "s101"
    if hmap:
        A(f"s_and_b32 {sF}, s2, 31")
        if hmap2:
            A(f"s_and_b32 {sH}, s2, 7")
            A(f"s_lshl_b32 {sH}, {sH}, 2")
            A(f"s_lshr_b32 s12, {sF}, 3")
            A(f"s_add_u32 {sH}, {sH}, s12")
        else:
            A(f"s_mov_b32 {sH}, {sF}")
        A(f"s_lshr_b32 {sR}, s2, 5")
        A(f"s_lshr_b32 {sB}, s2, 6")
        A(f"s_and_b32 {sHALF}, {sR}, 1")
        A(f"s_lshl_b32 {sI}, {sH}, 1")
        A(f"s_add_u32 {sI}, {sI}, {sHALF}")
        A(f"s_lshl_b32 {sBH}, {sB}, 5")
        A(f"s_add_u32 {sBH}, {sBH}, {sH}")
        A(f"s_lshl_b32 {sFI}, {sF}, 1")
        A(f"s_add_u32 {sFI}, {sFI}, {sHALF}")
        A(f"s_mov_b32 s99, {sFI}")
        if not rnd_tiles:
            A(f"s_lshr_b32 {sRHO}, {sF}, 3")
            A(f"s_lshl_b32 s12, {sB}, 2")
            A(f"s_add_u32 {sRHO}, {sRHO}, s12")
        if rnd_tiles: pass
        elif rhomode == 0:
            A(f"s_and_b32 s12, {sF}, 1")
            A(f"s_lshl_b32 s12, s12, 4")
            A(f"s_add_u32 {sRHO}, {sRHO}, s12")
        elif rhomode == 1:
            pass
        elif rhomode == 2:
            A(f"s_lshr_b32 s12, {sRHO}, 3")
            A(f"s_lshl_b32 {sRHO}, {sRHO}, 1")
            A(f"s_add_u32 {sRHO}, {sRHO}, s12")
        elif rhomode == 3:
            A(f"s_and_b32 s12, {sF}, 7")
            A(f"s_lshl_b32 s12, s12, 2")
            A(f"s_add_u32 {sRHO}, {sRHO}, s12")
        elif rhomode == 4:
            A(f"s_and_b32 s12, {sF}, 7")
            A(f"s_add_u32 {sRHO}, {sRHO}, s12")
        elif rhomode == 5:
            A(f"s_and_b32 s12, {sF}, 7")
            A(f"s_mul_i32 s12, s12, 3")
            A(f"s_mul_i32 {sRHO}, {sRHO}, 5")
            A(f"s_add_u32 {sRHO}, {sRHO}, s12")
    else:
        A(f"s_lshr_b32 {sB}, s2, 6")
        A(f"s_and_b32 {sI}, s2, 63")
        A(f"s_lshr_b32 {sH}, {sI}, 1")
        A(f"s_and_b32 {sHALF}, {sI}, 1")
        A(f"s_lshl_b32 {sBH}, {sB}, 5")
        A(f"s_add_u32 {sBH}, {sBH}, {sH}")
        A(f"s_lshl_b32 {sR}, {sB}, 1")
        A(f"s_add_u32 {sR}, {sR}, {sHALF}")
        A(f"s_lshr_b32 {sRHO}, {sBH}, 2")
        A(f"s_and_b32 s12, {sBH}, 3")
        A(f"s_lshl_b32 s12, s12, 3")
        A(f"s_add_u32 {sRHO}, {sRHO}, s12")
        A(f"s_and_b32 {sRHO}, {sRHO}, 31")
    if rnd_tiles:
        A(f"s_mul_i32 {sRHO}, {sBH}, {rnd_tiles:#x}")
        A(f"s_lshr_b32 {sRHO}, {sRHO}, 20")
    A("s_cmp_eq_u32 s3, 0")
    A("s_cbranch_scc1 L_S1")
    A("s_cmp_eq_u32 s3, 5")
    A("s_cbranch_scc1 L_GU")
    A("s_cmp_eq_u32 s3, 11")
    A("s_cbranch_scc1 L_ids")
    A("s_cmp_lt_u32 s3, 5")
    A("s_cbranch_scc1 L_K")
    if pref:
        A("s_cmp_eq_u32 s3, 10")
        A("s_cbranch_scc1 L_nopref")
        A("s_getpc_b64 s[44:45]")
        A.raw("L_pc:")
        A(f"s_sub_u32 s44, s44, L_pc-{KN}_kernel")
        A("s_subb_u32 s45, s45, 0")
        A(f"s_mov_b32 s46, L_codeend-{KN}_kernel")
        A("s_mov_b32 s47, 0x20000")
        A("s_lshr_b32 s60, s2, 3")
        A("s_lshl_b32 s60, s60, 2")
        A("s_add_u32 s60, s60, s3")
        A("s_and_b32 s60, s60, 31")
        A("s_lshl_b32 s60, s60, 10")
        A("v_lshlrev_b32 v1, 4, v0")
        A("buffer_load_dwordx4 v[160:163], v1, s[44:47], s60 offen")
        A.label("L_nopref")
    A("s_waitcnt lgkmcnt(0)")
    A("s_barrier")
    A("s_cmp_lt_u32 s3, 10")
    A("s_cbranch_scc1 L_V")
    A("s_branch L_D")
    A.label("L_ids")
    cur["x"] = "x"
    if prio: A("s_setprio 3")
    A("s_mov_b32 s13, 1")
    A("v_lshlrev_b32 v1, 2, v0")
    A("ds_write_b32 v1, v2")
    A("s_getreg_b32 s14, hwreg(HW_REG_XCC_ID)")
    A(f"s_lshl_b32 s68, {sH}, 7")
    A(f"s_add_u32 s68, s68, {XP_OFF}")
    A(f"s_lshl_b32 s60, {sR}, 3")
    A("s_add_u32 s69, s68, s60")
    A("s_waitcnt lgkmcnt(0)")
    load_tag()
    srd(52, WS, size=WS_SIZE)
    A("s_and_b32 s14, s14, 15")
    A("v_mov_b32 v4, s14")
    make_tag()
    A(f"v_mov_b32 v5, {sT}")
    A("s_mov_b64 exec, 1")
    A("buffer_store_dwordx2 v[4:5], v2, s[52:55], s69 offen sc1")
    A("s_mov_b64 exec, -1")
    A("s_barrier")
    A("s_branch L_ids2")
    A.label("L_GU")
    A(f"s_cmp_lt_u32 {sF}, 27")
    A("s_cbranch_scc1 L_S1")
    A("s_barrier")
    A("s_endpgm")
    KI_N = 4 if gu_first else 5

    nA, nB = nsplit
    NT = nA; SKIP = nA - nB
    assert nA + nB == 40 and SKIP % 2 == 0 and nA % 4 == 0 or nA == 20
    XD = NT // 2
    SEL, XR, AR, DR, WR = 8, 16, 40, 56, 64
    PR = 64
    def stage1():
        A.vm_reset(); cur["x"] = "q"
        if prio: A("s_setprio 3")
        A("v_lshrrev_b32 v3, 4, v0")
        A(f"s_mul_i32 s62, {sB}, 160")
        A(f"s_cmp_eq_u32 {sHALF}, 0")
        A(f"s_cselect_b32 s63, {nA}, {nB}")
        A(f"s_cselect_b32 s61, 0, {4*nA - SKIP}")
        A("s_add_u32 s62, s62, s61")
        A("v_mul_u32_u24 v6, s63, v3")
        A("v_add_u32 v6, s62, v6")
        A("v_bfe_u32 v7, v0, 3, 1")
        A("v_cmp_eq_u32 vcc, 1, v7")
        A("v_mul_u32_u24 v5, 1280, v7")
        A("v_lshl_add_u32 v5, v6, 1, v5")
        if SKIP:
            A(f"s_mul_i32 s61, {sHALF}, {SKIP}")
            A("v_add_u32 v6, s61, v6")
        A(f"s_lshl_b32 s60, {sH}, 8")
        A(f"s_lshl_b32 s61, {sF}, 7")
        A("s_cmp_eq_u32 s3, 0")
        A("s_movk_i32 s66, 3456")
        A("s_cselect_b32 s66, 8192, s66")
        A("s_cselect_b32 s60, s60, s61")
        A("s_mov_b32 s67, 0")
        A("v_mul_lo_u32 v6, v6, s66")
        A("v_and_b32 v7, 7, v0")
        A("v_lshl_add_u32 v6, v7, 4, v6")
        A("v_add_u32 v160, s60, v6")
        A("v_mov_b32 v161, 0")
        A("s_waitcnt lgkmcnt(0)")
        A(f"s_add_u32 s62, s{WQ}, 128")
        A(f"s_addc_u32 s63, s{WQ+1}, 0")
        A("s_cmp_eq_u32 s3, 0")
        A(f"s_cselect_b64 s[60:61], s[{WQ}:{WQ+1}], s[{WG}:{WG+1}]")
        A(f"s_cselect_b64 s[62:63], s[62:63], s[{WU}:{WU+1}]")
        A("v_mov_b32 v162, s60")
        A("v_mov_b32 v163, s61")
        A("v_mov_b32 v6, s62")
        A("v_mov_b32 v7, s63")
        A("v_cndmask_b32 v162, v162, v6, vcc")
        A("v_cndmask_b32 v163, v163, v7, vcc")
        A("v_lshl_add_u64 v[160:161], v[160:161], 0, v[162:163]")
        srd(44, X, size=5120)
        stamp(20)
        Ls = A.newlabel("L_s1skip")
        if SKIP:
            A(f"s_cmp_lg_u32 {sHALF}, 0")
            A(f"s_cbranch_scc1 {Ls}")
        for t in range(NT):
            w = WR + 4 * t
            if SKIP and t == SKIP: A.label(Ls)
            A(f"global_load_dwordx4 v[{w}:{w+3}], v[160:161], off {s1flags}", f"w{t}")
            if t != NT - 1:
                A("v_lshl_add_u64 v[160:161], v[160:161], 0, s[66:67]")
            if t == SKIP + 3:
                for beta in range(2):
                    xb = XR + 12 * beta
                    A(f"buffer_load_dwordx4 v[{xb}:{xb+3}], v5, s[44:47], 0 offen offset:{2560*beta}", "x")
                    A(f"buffer_load_dwordx4 v[{xb+4}:{xb+7}], v5, s[44:47], 0 offen offset:{2560*beta+16}", "x")
                    if XD > 10: A(f"buffer_load_dwordx4 v[{xb+8}:{xb+11}], v5, s[44:47], 0 offen offset:{2560*beta+32}", "x")
                    else: A(f"buffer_load_dwordx2 v[{xb+8}:{xb+9}], v5, s[44:47], 0 offen offset:{2560*beta+32}", "x")
        A("s_barrier")
        load_tag()
        for k in range(8): A(f"v_mov_b32 v{DR+k}, 0")
        make_sel(SEL, "v5", "v6", "v7")
        srd(52, WS, size=WS_SIZE)
        tag_consts()
        make_tag()
        A(f"v_mov_b32 v164, {sT}")
        A("v_lshrrev_b32 v5, 5, v0")
        A("v_lshlrev_b32 v5, 12, v5")
        A("v_and_b32 v6, 31, v0")
        A("v_lshl_add_u32 v5, v6, 4, v5")
        A("s_cmp_eq_u32 s3, 0")
        A(f"s_mov_b32 s68, {GP_OFF}")
        A(f"s_cselect_b32 s68, {QP_OFF}, s68")
        A(f"s_lshl_b32 s60, {sH}, 14")
        A(f"s_lshl_b32 s61, {sR}, 9")
        A("s_add_u32 s60, s60, s61")
        A(f"s_add_u32 s68, s60, s68")
        A(f"s_add_u32 s69, s68, 8192")
        A.wait_vm("x")
        Lm = A.newlabel("L_s1mskip")
        if SKIP:
            A(f"s_cmp_lg_u32 {sHALF}, 0")
            A(f"s_cbranch_scc1 {Lm}")
        for t in range(NT):
            w = WR + 4 * t
            if SKIP and t == SKIP: A.label(Lm)
            for beta in range(2):
                a = AR + 8 * (t & 1) + 4 * beta
                xd = XR + 12 * beta + (t >> 1)
                for j in range(4):
                    A(f"v_perm_b32 v{a+j}, v{xd}, v{xd}, v{SEL + 4*(t&1) + j}")
            if t > SKIP + 3: A.wait_vm(f"w{t}")
            if t == NT - 1: stamp(13)
            for beta in range(2):
                a = AR + 8 * (t & 1) + 4 * beta
                d = DR + 4 * beta
                A(f"v_mfma_f32_16x16x32_bf16 v[{d}:{d+3}], v[{a}:{a+3}], v[{w}:{w+3}], v[{d}:{d+3}]")
        for beta in range(2):
            for r in range(4):
                if nib: embed4(f"v{PR + 4*beta + r}", f"v{DR + 4*beta + r}", r)
                else: embed(f"v{PR + 4*beta + r}", f"v{DR + 4*beta + r}", r, "v164")
        wait_mode()
        pub_stores([f"buffer_store_dwordx4 v[{PR}:{PR+3}], v5, s[52:55], s68 offen",
                    f"buffer_store_dwordx4 v[{PR+4}:{PR+7}], v5, s[52:55], s69 offen"])

    A.label("L_S1")
    stamp_reset(); st["role"] = "q"
    stage1()
    A("s_cmp_lg_u32 s3, 0")
    A("s_cbranch_scc1 L_GUrest")
    stamp(2)
    A("v_lshlrev_b32 v5, 4, v0")
    A(f"s_lshl_b32 s60, {sH}, 14")
    A(f"s_lshl_b32 s61, {sB}, 12")
    A("s_add_u32 s60, s60, s61")
    A(f"s_add_u32 s68, s60, {QP_OFF}")
    if qdelay: A(f"s_sleep {qdelay}")
    A("s_mov_b32 s61, 0")
    A.label("L_qpoll")
    G = 60
    for m in range(4):
        A(f"buffer_load_dwordx4 v[{G+4*m}:{G+4*m+3}], v5, s[52:55], s68 offen offset:{m*1024} sc1")
    A.wait_vm_all()
    if nib: check4([G + 4 * m for m in range(4)], 100, "L_qpoll", 1)
    else:
        check_words(extract([G + 4 * m for m in range(4)], 100), "v6", "v7", "L_qpoll", 1)
        unmask([G + 4 * m for m in range(4)])
    for r in range(4):
        A(f"v_add_f32 v{G+r}, v{G+r}, v{G+4+r}")
        A(f"v_add_f32 v{G+8+r}, v{G+8+r}, v{G+12+r}")
    for r in range(4):
        A(f"v_add_f32 v{G+r}, v{G+r}, v{G+8+r}")
    xreduce("v_add_f32", [f"v{G+r}" for r in range(4)], [f"v{G+4+r}" for r in range(4)], 32)
    A(f"v_cvt_pk_bf16_f32 v6, v{G}, v{G+1}")
    A(f"v_cvt_pk_bf16_f32 v7, v{G+2}, v{G+3}")
    A("v_and_b32 v8, 15, v0")
    A("v_lshlrev_b32 v8, 4, v8")
    A("v_bfe_u32 v9, v0, 4, 1")
    A("v_lshl_add_u32 v8, v9, 3, v8")
    setexec(0xffffffff)
    A(f"ds_write_b64 v8, v[6:7] offset:{QB}")
    A("s_mov_b64 exec, -1")
    A(f"v_mov_b32 v6, {sT}")
    A(f"ds_write_b32 v2, v6 offset:{L_TW}")
    bump(F_Q)
    stamp(3)
    A(f"s_xor_b32 s60, {sHALF}, 1")
    A(f"s_lshl_b32 s61, {sBH}, 1")
    A("s_add_u32 s60, s60, s61")
    A("s_lshl_b32 s60, s60, 11")
    A(f"s_add_u32 s68, s60, {SP_OFF}")
    spin(F_S, 4, 2); cur["x"] = "s"
    stamp(23)
    A(f"ds_read_b128 v[60:63], v5 offset:{SB}")
    if spub_q:
        A("s_xor_b32 s69, s68, 2048")
        A(f"v_mov_b32 v65, {sT}")
        A(f"v_mov_b32 v67, {sT}")
        A(f"v_mov_b32 v69, {sT}")
        A(f"v_mov_b32 v71, {sT}")
        A("s_waitcnt lgkmcnt(0)")
        A("v_mov_b32 v64, v60")
        A("v_mov_b32 v66, v61")
        A("v_mov_b32 v68, v62")
        A("v_mov_b32 v70, v63")
        pub_stores(["buffer_store_dwordx4 v[64:67], v5, s[52:55], s69 offen",
                    "buffer_store_dwordx4 v[68:71], v5, s[52:55], s69 offen offset:1024"])
    A("s_mov_b32 s61, 0")
    A.label("L_spoll")
    A("buffer_load_dwordx4 v[64:67], v5, s[52:55], s68 offen sc1")
    A("buffer_load_dwordx4 v[68:71], v5, s[52:55], s68 offen offset:1024 sc1")
    A.wait_vm_all()
    check_words(["v65", "v67", "v69", "v71"], "v6", "v7", "L_spoll", 3)
    stamp(5)
    A("s_waitcnt lgkmcnt(0)")
    src = ["v60", "v61", "v62", "v63", "v64", "v66", "v68", "v70"]
    E = 72
    for k, s in enumerate(src):
        A(f"v_lshlrev_b32 v{E+2*k}, 16, {s}")
        A(f"v_and_b32 v{E+2*k+1}, 0xffff0000, {s}")
    A(f"v_max_f32 v6, v{E}, v{E+1}")
    for k in range(2, 16, 2):
        A(f"v_max3_f32 v6, v6, v{E+k}, v{E+k+1}")
    rowreduce("v_max_f32", "v6", "v7")
    A("s_mov_b32 s60, 0x3fb8aa3b")
    for k in range(16):
        A(f"v_sub_f32 v{E+k}, v{E+k}, v6")
    for k in range(16):
        A(f"v_mul_f32 v{E+k}, s60, v{E+k}")
    for k in range(16):
        A(f"v_exp_f32 v{E+k}, v{E+k}")
    A(f"v_add_f32 v6, v{E}, v{E+1}")
    A(f"v_add_f32 v7, v{E+2}, v{E+3}")
    for k in range(4, 16, 2):
        A(f"v_add_f32 v6, v6, v{E+k}")
        A(f"v_add_f32 v7, v7, v{E+k+1}")
    A("v_add_f32 v6, v6, v7")
    rowreduce("v_add_f32", "v6", "v7")
    A("v_rcp_f32 v6, v6")
    for k in range(16):
        A(f"v_mul_f32 v{E+k}, v{E+k}, v6")
    for k in range(8):
        A(f"v_cvt_pk_bf16_f32 v{60+k}, v{E+2*k}, v{E+2*k+1}")
    A(f"s_lshl_b32 s60, {sHALF}, 10")
    A("v_add_u32 v6, s60, v5")
    A(f"ds_write_b128 v6, v[60:63] offset:{PB}")
    A("s_xor_b32 s60, s60, 1024")
    if spub_q:
        A("v_add_u32 v6, s60, v5")
        A(f"ds_write_b128 v6, v[64:67] offset:{PB}")
    else:
        A("v_lshlrev_b32 v6, 3, v0")
        A("v_add_u32 v6, s60, v6")
        A(f"ds_write_b64 v6, v[64:65] offset:{PB}")
        A(f"ds_write_b64 v6, v[66:67] offset:{PB+512}")
    bump(F_P)
    stamp(6)
    A(f"s_cmp_ge_u32 s99, 20")
    A("s_cbranch_scc1 L_Qend")
    A(f"s_mul_i32 s60, {sB}, 20")
    A(f"s_add_u32 s60, s60, s99")
    A("s_lshl_b32 s60, s60, 13")
    A(f"s_add_u32 s68, s60, {FP_OFF}")
    A("s_add_u32 s69, s68, 4096")
    srd(44, OUT, size=5120)
    A("v_lshlrev_b32 v9, 3, v0")
    A(f"s_mul_i32 s70, {sB}, 1280")
    A(f"s_lshl_b32 s61, s99, 6")
    A("s_add_u32 s70, s70, s61")
    spin(F_PUB, 4, 4); cur["x"] = "f"
    stamp(22)
    A("s_mov_b32 s61, 0")
    def fissue(base):
        for m in range(8):
            so = "s68" if m < 4 else "s69"
            A(f"buffer_load_dwordx4 v[{base+4*m}:{base+4*m+3}], v5, s[52:55], {so} offen offset:{(m&3)*1024} sc1")
    if not fpipe:
        A.label("L_fpoll")
        fissue(G)
        A.wait_vm_all()
        check_words(extract([G + 4 * m for m in range(8)], 100), "v6", "v7", "L_fpoll", 5)
    else:
        sets = [G, 16, 120][:fpipe]
        for k in range(fpipe - 1):
            fissue(sets[k])
            A(f"s_sleep {6 if fpipe == 2 else 4}")
        A.label("L_fpoll")
        for k in range(fpipe):
            fissue(sets[(k + fpipe - 1) % fpipe])
            A(f"s_waitcnt vmcnt({8 * (fpipe - 1)})")
            words = extract([sets[k] + 4 * m for m in range(8)], 100)
            A(f"v_min_u32 v6, {words[0]}, {words[1]}")
            A(f"v_max_u32 v7, {words[0]}, {words[1]}")
            for q in range(2, 8, 2):
                A(f"v_min3_u32 v6, v6, {words[q]}, {words[q+1]}")
                A(f"v_max3_u32 v7, v7, {words[q]}, {words[q+1]}")
            A(f"v_cmp_ne_u32 vcc, {sT}, v6")
            A(f"v_cmp_ne_u32 s[64:65], {sT}, v7")
            A("s_or_b64 s[64:65], s[64:65], vcc")
            A("s_cmp_eq_u64 s[64:65], 0")
            A(f"s_cbranch_scc1 L_fok{k}")
        A("s_add_u32 s61, s61, 1")
        A(f"s_cmp_lt_u32 s61, {POLL_LIMIT}")
        A("s_cbranch_scc1 L_fpoll")
        A("s_mov_b32 s62, 5")
        A("s_branch L_fail")
        for k in range(fpipe):
            A.label(f"L_fok{k}")
            for m in range(4):
                for r in range(4):
                    A(f"v_add_f32 v{152+4*m+r}, v{sets[k]+4*m+r}, v{sets[k]+4*(m+4)+r}")
            if k != fpipe - 1: A("s_branch L_fsum")
        A.label("L_fsum")
        A.vm_reset()
    if fpipe: G = 152
    for step in ((2, 1) if fpipe else (4, 2, 1)):
        for m in range(step):
            for r in range(4):
                A(f"v_add_f32 v{G+4*m+r}, v{G+4*m+r}, v{G+4*(m+step)+r}")
    vs = [f"v{G+r}" for r in range(4)]; ts = [f"v{G+4+r}" for r in range(4)]
    for v in vs:
        A(f"v_add_f32_dpp {v}, {v}, {v} row_ror:8 row_mask:0xf bank_mask:0xf")
    xreduce("v_add_f32", vs, ts, 16)
    xreduce("v_add_f32", vs, ts, 32)
    A(f"v_cvt_pk_bf16_f32 v6, v{G}, v{G+1}")
    A(f"v_cvt_pk_bf16_f32 v7, v{G+2}, v{G+3}")
    setexec(0xff)
    A("buffer_store_dwordx2 v[6:7], v9, s[44:47], s70 offen")
    A("s_mov_b64 exec, -1")
    A("s_cmp_lg_u32 s2, 0")
    A("s_cbranch_scc1 L_Qend")
    A(f"v_mov_b32 v6, {sT}")
    A("s_mov_b64 exec, 1")
    A("buffer_store_dword v6, v2, s[52:55], 0 offen")
    A("s_mov_b64 exec, -1")
    if diag:
        if diag == 1: A("s_memrealtime s[96:97]")
        A("s_memrealtime s[94:95]")
        A("s_waitcnt lgkmcnt(0)")
        A("s_sub_u32 s60, s96, s78")
        A("s_add_u32 s60, s60, s94")
        A.label("L_diag")
        A("s_memrealtime s[94:95]")
        A("s_waitcnt lgkmcnt(0)")
        A("s_sub_u32 s61, s94, s60")
        A("s_cmp_lt_i32 s61, 0")
        A("s_cbranch_scc1 L_diag")
    A.label("L_Qend")
    if stamps:
        stamp(1)
        st["slots"].append((0, 78))
        stamp_flush()
    A("s_endpgm")

    PW, PACC, PA = 32, 112, 16
    def proj_loads(srdreg, flags, last=0):
        A("v_lshrrev_b32 v3, 4, v0")
        A("v_mul_u32_u24 v3, 5120, v3")
        A("v_and_b32 v4, 15, v0")
        A("v_lshl_add_u32 v3, v4, 4, v3")
        A("s_movk_i32 s63, 3840")
        for u in range(4):
            for seg in range(5):
                w = PW + 4 * (5 * u + seg)
                if last and 5 * u + seg == 20 - last: A("s_setprio 0")
                if u < 3:
                    A(f"buffer_load_dwordx4 v[{w}:{w+3}], v3, s[{srdreg}:{srdreg+3}], 0 offen offset:{u*1280+seg*256} {flags}", f"p{u}_{seg}")
                else:
                    A(f"buffer_load_dwordx4 v[{w}:{w+3}], v3, s[{srdreg}:{srdreg+3}], s63 offen offset:{seg*256} {flags}", f"p{u}_{seg}")
                if (5 * u + seg + 1) % wburst == 0: A("s_nop 0")
    def proj_addr(slot_sgpr):
        A("v_and_b32 v4, 15, v0")
        A("v_lshlrev_b32 v4, 5, v4")
        A("v_lshrrev_b32 v6, 4, v0")
        A("v_lshl_add_u32 v4, v6, 4, v4")
        A(f"v_add_u32 v4, {slot_sgpr}, v4")
    def proj_mfma(o01, o23):
        for u in range(4):
            a = PA + 4 * (u & 1)
            srcd = o01 if u < 2 else o23
            for j in range(4):
                A(f"v_perm_b32 v{a+j}, {srcd}, {srcd}, v{8 + 4*(u&1) + j}")
            for seg in range(5):
                w = PW + 4 * (5 * u + seg)
                d = PACC + 4 * seg
                A.wait_vm(f"p{u}_{seg}")
                c = "0" if u == 0 else f"v[{d}:{d+3}]"
                A(f"v_mfma_f32_16x16x32_bf16 v[{d}:{d+3}], v[{a}:{a+3}], v[{w}:{w+3}], {c}")
        setexec(0xffffffff)
        for seg in range(5):
            d = PACC + 4 * seg
            A(f"ds_write_b128 v4, v[{d}:{d+3}] offset:{AP + seg*512}")
        A("s_mov_b64 exec, -1")

    A.label("L_K"); cur["x"] = "s"; st["role"] = "k"
    stamp_reset(); A.vm_reset()
    if prio: A("s_setprio 2")
    A("s_sub_u32 s13, s3, 1")
    A("s_waitcnt lgkmcnt(0)")
    A(f"s_lshl_b32 s60, {sBH}, 20")
    A(f"s_lshr_b32 s61, {sBH}, 12")
    A(f"s_lshl_b32 s62, {sHALF}, 17")
    A("s_add_u32 s62, s62, 0xC0000")
    A("s_add_u32 s60, s60, s62")
    A("s_addc_u32 s61, s61, 0")
    srd(44, K, "s60", 0x20000, "s61")
    A("s_lshl_b32 s62, s13, 3")
    A(f"s_add_u32 s62, s62, {sRHO}")
    KR = 32
    Dt = [24, 28, 160, 164, 32, 36, 40, 44]
    if kdma:
        Dt = [24, 28, 132, 136, 140, 144, 148, 152]
        A("v_lshrrev_b32 v4, 4, v0")
        A("v_and_b32 v3, 15, v0")
        A("v_xor_b32 v5, v3, v4")
        for j in range(4):
            A(f"v_xor_b32 v6, {4*j}, v5")
            A("v_lshlrev_b32 v6, 4, v6")
            A(f"v_lshl_add_u32 v{156+j}, v4, 8, v6")
        A("s_lshl_b32 s15, s13, 15")
        A(f"s_add_u32 s15, s15, {KB}")
        if rnd_tiles: tile_init("s13", "s62", "s63", "s64")
        if onebar: A("s_barrier")
        stamp(24)
        for T in range(8):
            if rnd_tiles: tile_next("s62", "s63", "s64")
            else:
                A(f"s_add_u32 s60, s62, {T}")
                A("s_and_b32 s60, s60, 31")
                A("s_lshl_b32 s60, s60, 12")
            A(f"s_add_u32 m0, s15, {T*4096}")
            A("s_nop 0")
            for j in range(4):
                A(f"buffer_load_dwordx4 v{156+j}, s[44:47], s60 offen offset:{1024*j} {kf} lds", f"k{T}_{j}")
        bump(F_KI)
        stamp(14)
        srd(52, WS, size=WS_SIZE)
        for j in range(4):
            A(f"v_xor_b32 v6, {4*j}, v5")
            A("v_lshlrev_b32 v6, 4, v6")
            A(f"v_lshl_add_u32 v6, v3, 8, v6")
            A(f"v_add_u32 v{156+j}, s15, v6")
        A("v_lshlrev_b32 v4, 4, v4")
        spin(F_Q, 1, 6)
        for j in range(4):
            A(f"ds_read_b128 v[{8+4*j}:{8+4*j+3}], v4 offset:{QB + 64*j}")
        A(f"ds_read_b32 v5, v2 offset:{L_TW}")
        def kread(T):
            A.wait_vm(f"k{T}_3")
            if T == 7: stamp(8)
            for j in range(4):
                w = KR + 16 * (T % 3) + 4 * j
                A(f"ds_read_b128 v[{w}:{w+3}], v{156+j} offset:{T*4096}")
        kread(0)
        for T in range(8):
            if T < 7:
                kread(T + 1)
                A("s_waitcnt lgkmcnt(4)" if not (stamps and T == 6) else "s_waitcnt lgkmcnt(0)")
            else:
                A("s_waitcnt lgkmcnt(0)")
            for j in range(4):
                w = KR + 16 * (T % 3) + 4 * j
                d = Dt[T]
                c = "0" if j == 0 else f"v[{d}:{d+3}]"
                A(f"v_mfma_f32_16x16x32_bf16 v[{d}:{d+3}], v[{8+4*j}:{8+4*j+3}], v[{w}:{w+3}], {c}")
    else:
        A("v_and_b32 v3, 15, v0")
        A("v_lshlrev_b32 v3, 8, v3")
        A("v_lshrrev_b32 v4, 4, v0")
        A("v_lshl_add_u32 v3, v4, 4, v3")
        stamp(24)
        for T in range(8):
            A(f"s_add_u32 s60, s62, {T}")
            A("s_and_b32 s60, s60, 31")
            A("s_lshl_b32 s60, s60, 12")
            for j in range(4):
                w = KR + 16 * T + 4 * j
                A(f"buffer_load_dwordx4 v[{w}:{w+3}], v3, s[44:47], s60 offen offset:{64*j} {kf}", f"k{T}_{j}")
        bump(F_KI)
        stamp(14)
        srd(52, WS, size=WS_SIZE)
        A("v_lshlrev_b32 v4, 4, v4")
        spin(F_Q, 1, 6)
        for j in range(4):
            A(f"ds_read_b128 v[{8+4*j}:{8+4*j+3}], v4 offset:{QB + 64*j}")
        A(f"ds_read_b32 v5, v2 offset:{L_TW}")
        A("s_waitcnt lgkmcnt(0)")
        for T in range(8):
            for j in range(4):
                w = KR + 16 * T + 4 * j
                d = Dt[T]
                A.wait_vm(f"k{T}_{j}")
                if T == 7 and j == 3: stamp(8)
                c = "0" if j == 0 else f"v[{d}:{d+3}]"
                A(f"v_mfma_f32_16x16x32_bf16 v[{d}:{d+3}], v[{8+4*j}:{8+4*j+3}], v[{w}:{w+3}], {c}")
    A("s_mov_b32 s64, 0xffff0000")
    A("s_mov_b32 s65, 0xffff0000")
    A("s_mov_b32 s66, 0")
    A("s_mov_b32 s67, -1")
    for grp, dst in ((0, "v6"), (1, "v7")):
        d = Dt[4 * grp: 4 * grp + 4]
        A(f"v_cndmask_b32 v{d[0]}, v{d[0]}, v{d[1]}, s[64:65]")
        A(f"v_cndmask_b32 v{d[2]}, v{d[2]}, v{d[3]}, s[64:65]")
        A(f"v_cndmask_b32 {dst}, v{d[0]}, v{d[2]}, s[66:67]")
    A("v_cvt_pk_bf16_f32 v6, v6, v7")
    A("v_and_b32 v7, 0xffff0000, v6")
    A("v_lshlrev_b32 v6, 16, v6")
    A("s_mov_b32 s60, 0x3db504f3")
    A("v_mul_f32 v6, s60, v6")
    A("v_mul_f32 v7, s60, v7")
    A("v_cvt_pk_bf16_f32 v4, v6, v7")
    A("v_and_b32 v6, 7, v0")
    A("v_lshlrev_b32 v6, 3, v6")
    A("v_lshrrev_b32 v7, 3, v0")
    A("v_add_u32 v6, v6, v7")
    A("s_lshl_b32 s60, s13, 6")
    A("v_add_u32 v6, s60, v6")
    A("v_lshlrev_b32 v7, 3, v6")
    A(f"s_lshl_b32 s60, {sBH}, 1")
    A(f"s_add_u32 s60, s60, {sHALF}")
    A("s_lshl_b32 s60, s60, 11")
    A(f"s_add_u32 s60, s60, {SP_OFF}")
    if not spub_q: A("buffer_store_dwordx2 v[4:5], v7, s[52:55], s60 offen sc1", "sp")
    A("v_lshlrev_b32 v6, 2, v6")
    A(f"ds_write_b32 v6, v4 offset:{SB}")
    bump(F_S)
    stamp(4)
    A("v_mov_b32 v26, v5")
    if prio: A(f"s_setprio {wo_prio}")
    A(f"s_lshl_b32 s60, {sH}, 7")
    if v64:
        A(f"s_lshl_b32 s61, {sHALF}, 5")
        A("s_add_u32 s60, s60, s61")
        A("s_and_b32 s61, s13, 1")
        A("s_lshl_b32 s61, s61, 4")
        A("s_add_u32 s60, s60, s61")
        A("s_lshr_b32 s61, s13, 1")
        A("s_lshl_b32 s61, s61, 6")
        A("s_add_u32 s60, s60, s61")
    else:
        A(f"s_lshl_b32 s61, {sHALF}, 6")
        A("s_add_u32 s60, s60, s61")
        A("s_lshl_b32 s61, s13, 4")
        A("s_add_u32 s60, s60, s61")
    A("s_mul_i32 s60, s60, 1280")
    srd(48, WO, "s60", 20480)
    proj_loads(48, wflags, wo_last)
    stamp(17)
    if prio: A("s_setprio 3")
    make_sel(8, "v5", "v6", "v7")
    tag_consts()
    A("s_mul_i32 s14, s13, 2560")
    proj_addr("s14")
    A("v_lshrrev_b32 v5, 4, v0")
    A("v_lshlrev_b32 v5, 4, v5")
    A("s_lshl_b32 s60, s13, 6")
    A("v_add_u32 v5, s60, v5")
    A("v_lshlrev_b32 v27, 4, v0")
    A("s_mul_i32 s60, s13, 640")
    A("v_add_u32 v27, s60, v27")
    A("v_lshrrev_b32 v28, 3, v0")
    A("s_mul_i32 s60, s13, 5")
    A("v_add_u32 v28, s60, v28")
    A("v_lshlrev_b32 v28, 13, v28")
    A("v_and_b32 v7, 7, v0")
    A("v_lshl_add_u32 v28, v7, 4, v28")
    A(f"s_mul_i32 s68, {sB}, {20*8192}")
    A(f"s_lshl_b32 s60, {sI}, 7")
    A("s_add_u32 s68, s68, s60")
    A(f"s_add_u32 s68, s68, {FP_OFF}")
    rd = [f"ds_read_b128 v[{132+4*p}:{132+4*p+3}], v5 offset:{OP + 256*p}" for p in range(8)]
    if merged:
        spin(F_O, 3, 7, sleep=0)
        spin_read(F_O, 4, 7, rd)
        stamp(16)
    else:
        spin(F_O, 4, 7, sleep=0)
        stamp(16)
        for r in rd: A(r)
        A("s_waitcnt lgkmcnt(0)")
    for step in (4, 2, 1):
        for p in range(step):
            for r in range(4):
                A(f"v_add_f32 v{132+4*p+r}, v{132+4*p+r}, v{132+4*(p+step)+r}")
    A("v_cvt_pk_bf16_f32 v24, v132, v133")
    A("v_cvt_pk_bf16_f32 v25, v134, v135")
    proj_mfma("v24", "v25")
    bump(F_A)
    stamp(10)
    cur["x"] = "f"
    rd = [f"ds_read_b128 v[{32+4*s}:{32+4*s+3}], v27 offset:{AP + 2560*s}" for s in range(6)] + [f"ds_read_b64 v[56:57], v2 offset:{L_G}"]
    if merged:
        setexec(0xffffffffff)
        spin_read(F_A, 6, 8, rd)
        stamp(18)
    else:
        spin(F_A, 6, 8, sleep=0)
        stamp(18)
        setexec(0xffffffffff)
        for r in rd: A(r)
        A("s_waitcnt lgkmcnt(0)")
    for r in range(4):
        A(f"v_add_f32 v{32+r}, v{32+r}, v{36+r}")
        A(f"v_add_f32 v{40+r}, v{40+r}, v{44+r}")
        A(f"v_add_f32 v{48+r}, v{48+r}, v{52+r}")
    for r in range(4):
        A(f"v_add_f32 v{32+r}, v{32+r}, v{40+r}")
        A(f"v_mul_f32 v{48+r}, v{48+r}, v57")
    for r in range(4):
        A(f"v_fma_f32 v{32+r}, v{32+r}, v56, v{48+r}")
    for r in range(4):
        embed(f"v{64+r}", f"v{32+r}", r, "v26")
    A("buffer_store_dwordx4 v[64:67], v28, s[52:55], s68 offen sc1")
    A("s_mov_b64 exec, -1")
    bump(F_PUB)
    stamp(11)
    if stamps:
        A("s_cmp_lg_u32 s3, 1")
        A("s_cbranch_scc1 L_exit")
        stamp_flush()
    A("s_endpgm")

    A.label("L_GUrest")
    stamp_reset(); A.vm_reset(); cur["x"] = "g"
    stamp(21)
    A("v_lshrrev_b32 v5, 2, v0")
    A("v_lshlrev_b32 v5, 7, v5")
    A("v_and_b32 v6, 3, v0")
    A("v_lshl_add_u32 v5, v6, 4, v5")
    A(f"s_lshl_b32 s60, {sH}, 14")
    A(f"s_lshl_b32 s61, {sB}, 12")
    A("s_add_u32 s60, s60, s61")
    A(f"s_lshl_b32 s61, {sHALF}, 6")
    A("s_add_u32 s60, s60, s61")
    A(f"s_add_u32 s68, s60, {GP_OFF}")
    A("s_sleep 16")
    A("s_mov_b32 s61, 0")
    A.label("L_gpoll")
    A("buffer_load_dwordx4 v[60:63], v5, s[52:55], s68 offen sc1")
    A("buffer_load_dwordx4 v[64:67], v5, s[52:55], s68 offen offset:2048 sc1")
    A.wait_vm_all()
    if nib: check4([60, 64], 100, "L_gpoll", 9, sleep=16)
    else:
        check_words(extract([60, 64], 100), "v6", "v7", "L_gpoll", 9, sleep=16)
        unmask([60, 64])
    vs = [f"v{60+r}" for r in range(4)]; ts = [f"v{64+r}" for r in range(4)]
    for r in range(4): A(f"v_add_f32 v{60+r}, v{60+r}, v{64+r}")
    xreduce("v_add_f32", vs, ts, 16)
    xreduce("v_add_f32", vs, ts, 32)
    A("v_cvt_pk_bf16_f32 v64, v60, v61")
    A("v_cvt_pk_bf16_f32 v65, v62, v63")
    A("v_lshlrev_b32 v60, 16, v64")
    A("v_and_b32 v61, 0xffff0000, v64")
    A("v_lshlrev_b32 v62, 16, v65")
    A("v_and_b32 v63, 0xffff0000, v65")
    for r in range(4):
        A(f"v_mov_b32_dpp v{64+r}, v{60+r} row_shl:4 row_mask:0xf bank_mask:0xf")
    kk = -2.0 * math.sqrt(2.0 / math.pi) * math.log2(math.e)
    A(f"s_mov_b32 s60, {f2u(0.044715):#x}")
    A(f"s_mov_b32 s61, {f2u(kk):#x}")
    for r in range(4):
        x, t = f"v{60+r}", f"v{68+r}"
        A(f"v_mul_f32 {t}, {x}, {x}")
        A(f"v_mul_f32 {t}, {t}, {x}")
        A(f"v_fma_f32 {t}, {t}, s60, {x}")
        A(f"v_mul_f32 {t}, s61, {t}")
        A(f"v_exp_f32 {t}, {t}")
        A(f"v_add_f32 {t}, 1.0, {t}")
        A(f"v_rcp_f32 {t}, {t}")
        A(f"v_mul_f32 {x}, {x}, {t}")
    A("v_cvt_pk_bf16_f32 v68, v60, v61")
    A("v_cvt_pk_bf16_f32 v69, v62, v63")
    A("v_lshlrev_b32 v60, 16, v68")
    A("v_and_b32 v61, 0xffff0000, v68")
    A("v_lshlrev_b32 v62, 16, v69")
    A("v_and_b32 v63, 0xffff0000, v69")
    for r in range(4): A(f"v_mul_f32 v{60+r}, v{60+r}, v{64+r}")
    A("v_cvt_pk_bf16_f32 v60, v60, v61")
    A("v_cvt_pk_bf16_f32 v61, v62, v63")
    A("v_and_b32 v6, 3, v0")
    A("v_lshlrev_b32 v6, 4, v6")
    A("v_bfe_u32 v7, v0, 3, 1")
    A("v_lshl_add_u32 v6, v7, 3, v6")
    setexec(0x0f0f)
    A(f"ds_write_b64 v6, v[60:61] offset:{HB}")
    A("s_mov_b64 exec, -1")
    bump(F_H)
    stamp(12)
    stamp_flush()
    A("s_endpgm")

    A.label("L_V")
    stamp_reset(); A.vm_reset()
    if prio: A(f"s_setprio {v_prio}")
    A("s_sub_u32 s13, s3, 6")
    A(f"s_lshl_b32 s60, {sBH}, 20")
    A(f"s_lshr_b32 s61, {sBH}, 12")
    A(f"s_lshl_b32 s62, {sHALF}, {6 if v64 else 7}")
    A("s_add_u32 s62, s62, 0xC0000")
    A("s_add_u32 s60, s60, s62")
    A("s_addc_u32 s61, s61, 0")
    srd(44, V, "s60", 0x40000 - (64 if v64 else 128), "s61")
    A("v_lshrrev_b32 v3, 3, v0")
    A("v_lshlrev_b32 v4, 5, v3")
    if v64:
        A("v_lshrrev_b32 v3, 2, v0")
        A("v_lshlrev_b32 v3, 7, v3")
        A("v_and_b32 v5, 3, v0")
    else:
        A("v_lshlrev_b32 v3, 8, v3")
        A("v_and_b32 v5, 7, v0")
    A("v_lshl_add_u32 v3, v5, 4, v3")
    A("s_and_b32 s15, s13, 1")
    A("s_lshl_b32 s15, s15, 4")
    A(f"s_add_u32 s15, s15, {sRHO}")
    A("s_lshr_b32 s63, s13, 1")
    A("s_lshl_b32 s63, s63, 17")
    make_sel(8, "v5", "v6", "v7")
    VR = 32
    order = []
    spin(F_KI, KI_N, 13)
    stamp(19)
    for kk in range(2):
        if rnd_tiles:
            A("s_and_b32 s15, s13, 1")
            A("s_lshl_b32 s15, s15, 1")
            if vdesync:
                A(f"s_xor_b32 s67, {sHALF}, {kk}")
                tile_init("s15", "s64", "s65", "s66", "s67")
            else:
                tile_init("s15", "s64", "s65", "s66", kk)
            A("s_add_u32 s65, s65, s63")
        for T in range(8):
            if rnd_tiles: tile_next("s64", "s65", "s66")
            else:
                A(f"s_add_u32 s60, s15, {8*kk+T}")
                A("s_and_b32 s60, s60, 31")
                A("s_lshl_b32 s60, s60, 12")
                A("s_add_u32 s60, s60, s63")
            for u1 in range(2):
                n = len(order)
                w = VR + 4 * n
                par = T >> 2; u = 2 * (T & 3) + u1
                order.append((kk, par, u))
                A(f"buffer_load_dwordx4 v[{w}:{w+3}], v3, s[44:47], s60 offen offset:{2048*u1} {vf}", f"v{n}")
                if vburst == 1 and u1 == 0: A("s_nop 0")
    stamp(15)
    if prio: A("s_setprio 3")
    A("s_lshl_b32 s14, s13, 9")
    A("v_add_u32 v3, s14, v4")
    if vdesync:
        A(f"s_lshl_b32 s67, {sHALF}, 8")
        A("v_add_u32 v4, s67, v3")
        A("s_xor_b32 s67, s67, 256")
        A("v_add_u32 v5, s67, v3")
    spin(F_P, 1, 10)
    for kk in range(2):
        for hh in range(2):
            p = 16 + 8 * kk + 4 * hh
            if vdesync: A(f"ds_read_b128 v[{p}:{p+3}], v{4+kk} offset:{PB + 16*hh}")
            else: A(f"ds_read_b128 v[{p}:{p+3}], v3 offset:{PB + 256*kk + 16*hh}")
    A("s_waitcnt lgkmcnt(0)")
    A("v_and_b32 v3, 7, v0")
    A("v_lshlrev_b32 v3, 5, v3")
    A("v_bfe_u32 v1, v0, 4, 1")
    A("v_lshl_add_u32 v3, v1, 4, v3")
    A("v_lshrrev_b32 v1, 5, v0")
    A("v_lshl_add_u32 v3, v1, 8, v3")
    A("v_add_u32 v3, s14, v3")
    for n, (kk, par, u) in enumerate(order):
        w = VR + 4 * n
        a = 160 + 4 * (n & 1)
        pd = 16 + 8 * kk + u
        for j in range(4):
            A(f"v_perm_b32 v{a+j}, v{pd}, v{pd}, v{8 + 4*par + j}")
        A.wait_vm(f"v{n}")
        if n == 31: stamp(9)
        c = "0" if n == 0 else "v[4:7]"
        A(f"v_mfma_f32_16x16x32_bf16 v[4:7], v[{a}:{a+3}], v[{w}:{w+3}], {c}")
    A("v_mov_b32 v1, 1")
    A("s_mov_b32 exec_lo, 0x00ff00ff")
    A("s_mov_b32 exec_hi, 0xff00ff00")
    A(f"ds_write_b128 v3, v[4:7] offset:{OP}")
    A("s_mov_b64 exec, 1")
    A(f"ds_add_u32 v2, v1 offset:{F_O}")
    A("s_mov_b64 exec, -1")
    stamp(7)
    if stamps:
        A("s_cmp_lg_u32 s3, 6")
        A("s_cbranch_scc1 L_exit")
        stamp_flush()
    A("s_endpgm")

    A.label("L_D")
    stamp_reset(); A.vm_reset()
    if prio and d_prio: A(f"s_setprio {d_prio}")
    A("s_sub_u32 s13, s3, 10")
    A(f"s_mul_i32 s60, {sB}, 1280")
    srd(44, X, "s60", 1280)
    srd(48, GW, size=1280)
    A("v_lshlrev_b32 v3, 5, v0")
    A("buffer_load_dwordx4 v[8:11], v3, s[44:47], 0 offen")
    A("buffer_load_dwordx4 v[12:15], v3, s[44:47], 0 offen offset:16")
    A("buffer_load_dwordx4 v[16:19], v3, s[48:51], 0 offen")
    A("buffer_load_dwordx4 v[20:23], v3, s[48:51], 0 offen offset:16")
    A.wait_vm_all()
    A("v_mov_b32 v4, 0")
    for k in range(8):
        A(f"v_lshlrev_b32 v24, 16, v{8+k}")
        A(f"v_and_b32 v25, 0xffff0000, v{8+k}")
        A(f"v_lshlrev_b32 v26, 16, v{16+k}")
        A(f"v_and_b32 v27, 0xffff0000, v{16+k}")
        A("v_mul_f32 v24, v24, v26")
        A("v_mul_f32 v25, v25, v27")
        A("v_cvt_pk_bf16_f32 v24, v24, v25")
        A("v_and_b32 v25, 0xffff0000, v24")
        A("v_lshlrev_b32 v24, 16, v24")
        A("v_add_f32 v4, v4, v24")
        A("v_add_f32 v4, v4, v25")
    rowreduce("v_add_f32", "v4", "v5")
    A("v_cvt_pk_bf16_f32 v4, v4, v4")
    A("v_lshlrev_b32 v4, 16, v4")
    A("v_mul_f32 v4, 0xbfb8aa3b, v4")
    A("v_exp_f32 v4, v4")
    A("v_add_f32 v4, 1.0, v4")
    A("v_rcp_f32 v4, v4")
    A("v_cvt_pk_bf16_f32 v4, v4, v4")
    A("v_lshlrev_b32 v4, 16, v4")
    A("v_sub_f32 v5, 1.0, v4")
    A("v_cvt_pk_bf16_f32 v5, v5, v5")
    A("v_lshlrev_b32 v5, 16, v5")
    A("s_mov_b64 exec, 1")
    A(f"ds_write_b64 v2, v[4:5] offset:{L_G}")
    A("s_mov_b64 exec, -1")
    if xcc:
        A("s_branch L_nogate")
        A.label("L_ids2")
        cur["x"] = "x"; A.vm_reset()
        A("v_and_b32 v3, 7, v0")
        A("v_lshlrev_b32 v3, 3, v3")
        A("s_mov_b32 s61, 0")
        A.label("L_xpoll")
        A("buffer_load_dwordx2 v[6:7], v3, s[52:55], s68 offen sc1")
        A.wait_vm_all()
        check_words(["v7"], "v8", "v9", "L_xpoll", 16)
        if dynf:
            A("v_lshrrev_b32 v8, 8, v6")
            A("v_and_b32 v6, 0xff, v6")
            A("s_mov_b64 exec, 1")
            A(f"ds_write_b32 v2, v8 offset:{L_F}")
            A("s_mov_b64 exec, -1")
        A("v_cmp_ne_u32 vcc, s14, v6")
        A("s_cmp_eq_u64 vcc, 0")
        A("s_cselect_b32 s60, 1, 2")
        if forcemode: A(f"s_mov_b32 s60, {forcemode}")
        A("v_mov_b32 v4, s60")
        A("s_mov_b64 exec, 1")
        A(f"ds_write_b32 v2, v4 offset:{F_X}")
        A("s_mov_b64 exec, -1")
        stamp(25)
        stamp_flush()
        A(f"s_setprio {d_prio}")
    A.label("L_nogate")
    A.vm_reset()
    if dynf: get_f()
    A("s_add_u32 s14, s13, 4")
    A("s_mul_i32 s14, s14, 2560")
    A(f"s_cmp_lt_u32 {sF}, 27")
    A("s_cbranch_scc1 L_Dwork")
    for k in range(4): A(f"v_mov_b32 v{8+k}, 0")
    A("v_lshlrev_b32 v4, 4, v0")
    A("v_add_u32 v4, s14, v4")
    A(f"ds_write_b128 v4, v[8:11] offset:{AP}")
    A(f"ds_write_b128 v4, v[8:11] offset:{AP+1024}")
    setexec(0xffffffff)
    A(f"ds_write_b128 v4, v[8:11] offset:{AP+2048}")
    A("s_mov_b64 exec, -1")
    bump(F_A)
    A("s_endpgm")
    A.label("L_Dwork")
    A(f"s_lshl_b32 s60, {sFI}, 5")
    A("s_lshl_b32 s61, s13, 4")
    A("s_add_u32 s60, s60, s61")
    A("s_mul_i32 s60, s60, 1280")
    srd(48, WD, "s60", 20480)
    make_sel(8, "v5", "v6", "v7")
    spin(F_KI, KI_N, 14)
    proj_loads(48, wflags)
    proj_addr("s14")
    A("v_lshrrev_b32 v5, 4, v0")
    A("v_lshlrev_b32 v5, 3, v5")
    A("s_lshl_b32 s60, s13, 5")
    A("v_add_u32 v5, s60, v5")
    spin(F_H, 1, 11)
    A(f"ds_read_b64 v[24:25], v5 offset:{HB}")
    A("s_waitcnt lgkmcnt(0)")
    proj_mfma("v24", "v25")
    bump(F_A)
    A("s_endpgm")

    A.label("L_fail")
    srd(44, DBG, size=256)
    A("s_lshl_b32 s60, s62, 2")
    A("v_mov_b32 v1, 1")
    A("s_mov_b64 exec, 1")
    A("buffer_atomic_add v1, v2, s[44:47], s60 offen")
    A.label("L_exit")
    A("s_endpgm")
    A.raw("L_codeend:")

    nv = (A.maxv + 7) // 8 * 8
    assert nv <= 168, nv
    A.raw('.section .rodata,"a"')
    A.raw(".p2align 6")
    A.raw(f".amdhsa_kernel {KN}_kernel")
    A.raw(f"  .amdhsa_next_free_vgpr {nv}")
    A.raw(f"  .amdhsa_next_free_sgpr {102}")
    A.raw(f"  .amdhsa_accum_offset {nv}")
    A.raw("  .amdhsa_group_segment_fixed_size 0")
    A.raw("  .amdhsa_kernarg_size 104")
    A.raw("  .amdhsa_user_sgpr_count 2")
    A.raw("  .amdhsa_user_sgpr_kernarg_segment_ptr 1")
    A.raw("  .amdhsa_system_sgpr_workgroup_id_x 1")
    A.raw(".end_amdhsa_kernel")
    open(name, "w").write(A.text())

if __name__ == "__main__":
    kw = dict(gu_first=True, rnd_tiles=0x85EBCA6B, d_prio=1, fpipe=3, wo_last=5, nsplit=(24, 16))
    gen("k_b.s", stamps=True, pref=0, **kw)
    gen("k_c.s", stamps=True, pref=1, **kw)
    gen("t_b.s", pref=0, **kw)
    gen("t_c.s", pref=1, **kw)
    import gen5
    gen5.gen("k_a.s", stamps=True, **kw)
```
